```python
import torch

def _softmax(x, axis=-1):
    return torch.softmax(x, dim=axis)
def _gelu(x):
    return torch.nn.functional.gelu(x, approximate="tanh")
def _silu(x):
    return torch.nn.functional.silu(x)
def _sigmoid(x):
    return torch.sigmoid(x)
def _layernorm(x, axis=-1, eps=1e-5):
    m = x.mean(dim=axis, keepdim=True)
    v = x.var(dim=axis, keepdim=True, unbiased=False)
    return (x - m) / torch.sqrt(v + eps)
def _scatter_add(tgt, idx, src, axis=0):
    return tgt.clone().index_add_(axis, idx, src)
def _segment_sum(src, seg, n):
    out = torch.zeros((n,) + src.shape[1:], dtype=src.dtype)
    return out.index_add_(0, seg, src)
def _pad(x, pw):
    flat = tuple(v for pair in reversed(pw) for v in pair)
    return torch.nn.functional.pad(x, flat)

kernel_name = 'gated_mix__gqa_block_cached__sliding_block_cached__decode'

def setup_inputs():

    _w = (lambda a: (lambda t: t.to(torch.bfloat16) if t.is_floating_point() else t)(torch.as_tensor(a)))
    def _A_setup():
        B, Sq, D = 2, 1, 512
        Hq, Hkv, Sk, Dh = 32, 32, 4096, 128
        assert Hq % Hkv == 0, (Hq, Hkv)
        return {
            "x": _w((lambda *s: torch.randn(*s, dtype=torch.bfloat16) * 0.05)(B, Sq, D)),
            "k_cache": _w((lambda *s: torch.randn(*s, dtype=torch.bfloat16) * 6.4)(B, Hkv, Sk, Dh)),
            "v_cache": _w((lambda *s: torch.randn(*s, dtype=torch.bfloat16) * 0.05)(B, Hkv, Sk, Dh)),
            "wq": _w((lambda *s: torch.randn(*s, dtype=torch.bfloat16) * 6.4)(D, Hq * Dh) * (D ** -0.5)),
            "wo": _w((lambda *s: torch.randn(*s, dtype=torch.bfloat16) * 0.05)(Hq * Dh, D) * ((Hq * Dh) ** -0.5)),
        }
    _A_in = _A_setup()

    def _B_setup():
        B, Sq, D = 2, 1, 512
        Hq, Hkv, Sk, Dh = 32, 32, 4096, 128
        assert Hq % Hkv == 0, (Hq, Hkv)
        return {
            "x": _w((lambda *s: torch.randn(*s, dtype=torch.bfloat16) * 0.05)(B, Sq, D)),
            "k_cache": _w((lambda *s: torch.randn(*s, dtype=torch.bfloat16) * 6.4)(B, Hkv, Sk, Dh)),
            "v_cache": _w((lambda *s: torch.randn(*s, dtype=torch.bfloat16) * 0.05)(B, Hkv, Sk, Dh)),
            "wq": _w((lambda *s: torch.randn(*s, dtype=torch.bfloat16) * 6.4)(D, Hq * Dh) * (D ** -0.5)),
            "wo": _w((lambda *s: torch.randn(*s, dtype=torch.bfloat16) * 0.05)(Hq * Dh, D) * ((Hq * Dh) ** -0.5)),
        }
    _B_in = _B_setup()

    return {
        "A_x": _A_in["x"],
        "A_k_cache": _A_in["k_cache"],
        "A_v_cache": _A_in["v_cache"],
        "A_wq": _A_in["wq"],
        "A_wo": _A_in["wo"],
        "B_x": _B_in["x"],
        "B_k_cache": _B_in["k_cache"],
        "B_v_cache": _B_in["v_cache"],
        "B_wq": _B_in["wq"],
        "B_wo": _B_in["wo"],
        "gate_w": _w((lambda *s: torch.randn(*s, dtype=torch.bfloat16) * 0.05)(512) * 16.0),
    }

def reference(A_x, A_k_cache, A_v_cache, A_wq, A_wo, B_x, B_k_cache, B_v_cache, B_wq, B_wo, gate_w):
    def _A_ref(x, k_cache, v_cache, wq, wo):
        B, Sq, D = x.shape
        Hq, Dh = 32, 128
        Hkv = k_cache.shape[1]
        rep = Hq // Hkv
        q = (lambda x, *d: x.permute(*d))((x @ wq).reshape(B, Sq, Hq, Dh), 0, 2, 1, 3)
        k = (lambda x, n, axis: torch.repeat_interleave(x, n, dim=axis))(k_cache, rep, axis=1)
        v = (lambda x, n, axis: torch.repeat_interleave(x, n, dim=axis))(v_cache, rep, axis=1)
        scores = torch.einsum("bhqd,bhkd->bhqk", q, k) * (Dh ** -0.5)
        p = _softmax(scores, axis=-1)
        o = torch.einsum("bhqk,bhkd->bhqd", p, v)
        return (lambda x, *d: x.permute(*d))(o, 0, 2, 1, 3).reshape(B, Sq, Hq * Dh) @ wo

    def _B_ref(x, k_cache, v_cache, wq, wo):
        B, Sq, D = x.shape
        Hq, Dh = 32, 128
        Hkv, Sk = k_cache.shape[1], k_cache.shape[2]
        W = min(4096, max(256, Sk // 4))
        rep = Hq // Hkv
        q = (lambda x, *d: x.permute(*d))((x @ wq).reshape(B, Sq, Hq, Dh), 0, 2, 1, 3)
        k = (lambda x, n, axis: torch.repeat_interleave(x, n, dim=axis))(k_cache[:, :, Sk - W:, :], rep, axis=1)
        v = (lambda x, n, axis: torch.repeat_interleave(x, n, dim=axis))(v_cache[:, :, Sk - W:, :], rep, axis=1)
        scores = torch.einsum("bhqd,bhkd->bhqk", q, k) * (Dh ** -0.5)
        p = _softmax(scores, axis=-1)
        o = torch.einsum("bhqk,bhkd->bhqd", p, v)
        return (lambda x, *d: x.permute(*d))(o, 0, 2, 1, 3).reshape(B, Sq, Hq * Dh) @ wo

    x = A_x
    g = _sigmoid((x * gate_w).sum(-1, keepdims=True))
    a = _A_ref(x, A_k_cache, A_v_cache, A_wq, A_wo)
    b = _B_ref(x, B_k_cache, B_v_cache, B_wq, B_wo)
    return g * a + (1 - g) * b
```

```python
import sys, struct
KN = "gated_mix__gqa_block_cached__sliding_block_cached__decode_kernel"

def f2u(x): return struct.unpack("<I", struct.pack("<f", x))[0]

HEADER = open("gated_mix__gqa_block_cached__sliding_block_cached__decode.s.ref").read().split("; Override launch")[0] \
    if False else ""

WS_QP = 0x0
WS_ML = 0x80000
WS_Y  = 0x100000
WS_ST = 0x200000
L_WO = 0
WO_SLICE = 33280
L_O = 4 * WO_SLICE
O_ROW = 576
L_Q = L_O + 4 * O_ROW
L_F = L_Q + 512
LDS_BYTES = L_F + 64

def gen(path, stamps=False, PACE=14, WOA_PACE=16, spin=40000):
    L = []
    A = L.append
    nstamp = [0]
    def stamp(k):
        if stamps:
            A("s_memrealtime s[96:97]"); A("s_waitcnt lgkmcnt(0)"); A(f"v_writelane_b32 v19, s96, {k}")
    def stamp_flush():
        if stamps:
            A("s_lshl_b32 s96, s2, 3"); A("s_add_u32 s96, s96, s38"); A("s_lshl_b32 s96, s96, 8"); A(f"s_add_u32 s96, s96, {WS_ST}")
            A("s_getreg_b32 s97, hwreg(HW_REG_XCC_ID)"); A("v_writelane_b32 v19, s97, 63")
            A("v_lshlrev_b32 v18, 2, v0"); A("v_add_u32 v18, s96, v18")
            A("global_store_dword v18, v19, s[30:31]")

    A(f"; @launch grid=(256,1,1) block=(320,1,1) lds={LDS_BYTES}")
    A('.amdgcn_target "amdgcn-amd-amdhsa--gfx950"')
    A(".text"); A(f".globl {KN}"); A(".p2align 8"); A(f".type {KN},@function"); A(f"{KN}:")
    A("s_cmp_ge_u32 s2, 256"); A("s_cbranch_scc1 L_end")
    A("s_load_dwordx16 s[4:19], s[0:1], 0")
    A("s_load_dwordx8 s[20:27], s[0:1], 64")
    A("s_load_dwordx4 s[28:31], s[0:1], 96")
    A("v_lshrrev_b32 v1, 6, v0")
    A("s_and_b32 s32, s2, 7"); A("s_lshr_b32 s33, s2, 3")
    A("v_readfirstlane_b32 s38, v1")
    A("v_and_b32 v0, 63, v0")
    A("s_lshr_b32 s34, s33, 3"); A("s_lshl2_add_u32 s34, s32, s34")
    A("s_and_b32 s35, s33, 7")
    A("s_lshr_b32 s36, s35, 2")
    A("s_and_b32 s37, s35, 3")
    A("v_lshrrev_b32 v16, 4, v0")
    A("v_and_b32 v17, 15, v0")
    if stamps:
        A("v_mov_b32 v19, 0")
    A("s_cmp_eq_u32 s38, 0"); A("s_cbranch_scc1 L_comm")

    vK, vV, vN, vW = 1, 2, 3, 4
    MASK = 5
    vOW, vOR = 9, 10
    TRA = 11
    vY, vQ = 15, 18
    if stamps: vQ = 100
    Q = 20
    S = 36
    R = 52
    AOP = [56, 60]
    DK = [64, 68]
    O = 72
    T = 76
    F = 80
    OA = 84
    BT = 100
    if stamps: BT = 104
    NBT = (128 - BT) // 4
    X, Y = 128, 192

    A("s_sub_u32 s39, s38, 1")
    A("s_lshl_b32 s40, s36, 5"); A("s_add_u32 s40, s40, s34"); A("s_lshl_b32 s40, s40, 20")
    A("s_lshl_b32 s41, s39, 14"); A("s_add_u32 s40, s40, s41")
    A("s_lshl_b32 s41, s37, 16"); A("s_add_u32 s41, s41, s40"); A(f"s_add_u32 s41, s41, {3072*256}")
    A(f"v_lshrrev_b32 v{vK}, 2, v17"); A(f"v_lshlrev_b32 v{vK}, 8, v{vK}")
    A(f"v_lshl_add_u32 v{vK}, v16, 6, v{vK}")
    A(f"v_and_b32 v{vN}, 3, v0"); A(f"v_lshl_add_u32 v{vK}, v{vN}, 4, v{vK}")
    A(f"v_lshlrev_b32 v{vV}, 4, v0")
    A(f"v_lshlrev_b32 v{vW}, 4, v17"); A(f"v_lshlrev_b32 v{vN}, 6, v16"); A(f"v_xor_b32 v{vW}, v{vW}, v{vN}")
    A(f"v_lshl_add_u32 v{vW}, v16, 10, v{vW}")
    A("s_movk_i32 s72, 0x1000"); A("s_movk_i32 s73, 0x2000"); A("s_movk_i32 s74, 0x3000")
    A("s_movk_i32 s54, 0x4000"); A("s_mov_b32 s55, 0x20000")
    A("s_movk_i32 s58, 0x4000"); A("s_mov_b32 s59, 0x20000")
    A("s_mov_b32 s62, 0x20000"); A("s_mov_b32 s63, 0x20000")
    A("s_lshl_b32 s42, s34, 17"); A("s_lshl_b32 s43, s39, 8"); A("s_add_u32 s42, s42, s43")
    A(f"s_mul_i32 s79, s39, {WO_SLICE}")
    A("s_mov_b32 s78, 0")
    A("s_waitcnt lgkmcnt(0)")
    stamp(0)
    A("s_add_u32 s52, s16, s41"); A("s_addc_u32 s53, s17, 0")
    A("s_add_u32 s56, s18, s41"); A("s_addc_u32 s57, s19, 0")
    A("s_add_u32 s60, s22, s42"); A("s_addc_u32 s61, s23, 0")
    SOFF = ["0", "s72", "s73", "s74"]
    fill = []
    Fm = fill.append
    Fm("s_lshl_b32 s41, s37, 18"); Fm("s_add_u32 s41, s41, s40")
    Fm("s_add_u32 s48, s6, s41"); Fm("s_addc_u32 s49, s7, 0")
    Fm("s_add_u32 s50, s8, s41"); Fm("s_addc_u32 s51, s9, 0")
    Fm("s_movk_i32 s46, 0x4000"); Fm("s_mov_b32 s47, 0x20000")
    Fm(f"v_and_b32 v{OA}, 1, v17"); Fm(f"v_lshlrev_b32 v{OA}, 4, v{OA}"); Fm(f"v_mov_b32 v{OA+1}, 0xffff")
    Fm(f"v_lshlrev_b32 v{OA}, v{OA}, v{OA+1}")
    Fm(f"v_lshrrev_b32 v{OA+1}, 1, v17")
    for j in range(4):
        Fm(f"v_cmp_eq_u32 vcc, {j}, v{OA+1}"); Fm("s_nop 1"); Fm(f"v_cndmask_b32 v{MASK+j}, 0, v{OA}, vcc")
    Fm(f"s_mul_i32 s43, s39, {O_ROW}"); Fm(f"s_add_u32 s43, s43, {L_O}")
    Fm(f"v_lshrrev_b32 v{vOW}, 1, v16"); Fm(f"v_lshlrev_b32 v{vOW}, 8, v{vOW}"); Fm(f"v_lshl_add_u32 v{vOW}, v17, 4, v{vOW}")
    Fm(f"v_and_b32 v{OA}, 1, v16"); Fm(f"v_lshl_add_u32 v{vOW}, v{OA}, 3, v{vOW}"); Fm(f"v_add_u32 v{vOW}, s43, v{vOW}")
    Fm(f"v_and_b32 v{OA}, 3, v0"); Fm(f"v_mul_u32_u24 v{vOR}, {O_ROW}, v{OA}"); Fm(f"v_lshl_add_u32 v{vOR}, v16, 4, v{vOR}")
    Fm(f"v_add_u32 v{vOR}, {L_O}, v{vOR}")
    Fm(f"v_lshl_add_u32 v{vQ}, v16, 2, v{OA}"); Fm(f"v_lshlrev_b32 v{vQ}, 4, v{vQ}"); Fm(f"v_add_u32 v{vQ}, {L_Q}, v{vQ}")
    Fm(f"v_lshrrev_b32 v{OA+1}, 2, v17")
    Fm(f"v_mul_u32_u24 v{OA+2}, 2080, v16"); Fm(f"v_lshl_add_u32 v{OA+2}, v{OA+1}, 8, v{OA+2}")
    Fm(f"v_lshl_add_u32 v{OA+2}, v{OA}, 3, v{OA+2}")
    Fm(f"s_mul_i32 s43, s39, {WO_SLICE}"); Fm(f"v_add_u32 v{OA+2}, s43, v{OA+2}")
    for ch in range(4):
        Fm(f"v_xor_b32 v{OA+3}, {ch}, v{OA+1}"); Fm(f"v_lshl_add_u32 v{TRA+ch}, v{OA+3}, 6, v{OA+2}")
    Fm(f"v_lshl_add_u32 v{vY}, v16, 2, v{OA+1}"); Fm("s_lshl_b32 s43, s39, 3"); Fm(f"v_add_u32 v{vY}, s43, v{vY}")
    Fm(f"v_lshlrev_b32 v{vY}, 13, v{vY}"); Fm(f"v_lshl_add_u32 v{vY}, v{OA}, 4, v{vY}")
    Fm(f"v_lshrrev_b32 v{OA+3}, 5, v0"); Fm(f"v_lshl_add_u32 v{vY}, v{OA+3}, 30, v{vY}")
    Fm("s_lshl2_add_u32 s43, s34, s37"); Fm("s_lshl_b32 s43, s43, 6"); Fm("s_lshl_b32 s41, s36, 18"); Fm("s_add_u32 s43, s43, s41")
    Fm(f"s_add_u32 s43, s43, {WS_Y}")
    Fm("s_add_u32 s68, s30, s43"); Fm("s_addc_u32 s69, s31, 0"); Fm("s_mov_b32 s70, 0"); Fm("s_mov_b32 s71, 0x20000")
    Fm("s_lshl_b32 s64, s36, 5"); Fm("s_add_u32 s64, s64, s34"); Fm("s_lshl_b32 s64, s64, 7")
    Fm("s_lshl2_add_u32 s43, s37, s39"); Fm("s_lshl3_add_u32 s64, s43, s64"); Fm(f"s_add_u32 s64, s64, {WS_ML + 8192}")
    Fm(f"s_mov_b32 s65, {f2u(0.08838834764831845):#x}")
    Fm(f"s_mov_b32 s66, {f2u(1.4426950408889634):#x}")
    Fm("s_mov_b32 s67, 0xffff0000")
    for k in range(16): Fm(f"v_mov_b32 v{Q+k}, 0")
    for k in range(4, 16): Fm(f"v_mov_b32 v{S+k}, 0xff800000")
    for k in range(4): Fm(f"v_mov_b32 v{T+k}, 0")
    for k in range(4): Fm(f"v_mov_b32 v{O+k}, 0")

    issued = 0
    def pace():
        nonlocal issued
        if issued > PACE: A(f"s_waitcnt vmcnt({PACE})")
        issued += 1
    did_fill = False
    for i in range(32):
        if issued >= PACE and not did_fill:
            L.extend(fill); did_fill = True
        st, srd, vo = (X, 52, vK) if i < 16 else (Y, 56, vV)
        k = i & 15
        pace()
        A(f"buffer_load_dwordx4 v[{st+4*k}:{st+4*k+3}], v{vo}, s[{srd}:{srd+3}], {SOFF[k>>2]} offen offset:{(k&3)*1024} nt")
        A("s_mov_b32 m0, s79")
        A(f"s_add_u32 s79, s79, {1024 if i % 2 == 0 else 1056}")
        pace()
        A(f"buffer_load_dwordx4 v{vW}, s[60:63], s78 offen nt lds")
        A("s_add_u32 s78, s78, 0x1000")
    stamp(1)
    A("s_barrier")
    stamp(2)
    def load_q(br):
        A(f"ds_read_b128 v[{OA}:{OA+3}], v{vQ} offset:{br*256}")
        A("s_waitcnt lgkmcnt(0)")
        for j in range(4):
            for k in range(4):
                A(f"v_mov_b32_dpp v{Q+4*j+k}, v{OA+k} quad_perm:[0,1,2,3] row_mask:0xf bank_mask:{1<<j:#x}")
    def nxt(base, tile, voff):
        if base is None:
            A("s_mov_b32 s46, 0")
        else:
            A(f"s_add_u32 s44, s{base}, {tile*65536}"); A(f"s_addc_u32 s45, s{base+1}, 0")
            if voff is not None: A(f"v_mov_b32 v{vN}, v{voff}")
    def call(name): A(f"s_call_b64 s[76:77], {name}")
    def saveR(t):
        for k in range(4): A(f"v_mov_b32 v{S+4*t+k}, v{R+k}")
    def setP(t):
        for k in range(4): A(f"v_mov_b32 v{R+k}, v{S+4*t+k}")
    nxt(48, 0, vK)
    load_q(1)
    call("L_KX"); saveR(0)
    call("L_SM")
    stamp(3)
    nxt(48, 1, None); setP(0)
    call("L_VY")
    call("L_OW")
    stamp(4)
    load_q(0)
    nxt(48, 2, None)
    call("L_KX"); saveR(0)
    nxt(48, 3, None)
    call("L_KY"); saveR(1)
    stamp(5)
    A("s_barrier")
    stamp(6)
    call("L_OUT")
    A("s_barrier")
    stamp(7)
    nxt(50, 0, vV)
    call("L_KX"); saveR(2)
    nxt(50, 1, None)
    call("L_KY"); saveR(3)
    A("s_sub_u32 s64, s64, 8192")
    call("L_SM")
    stamp(8)
    for k in range(4): A(f"v_mov_b32 v{O+k}, 0")
    nxt(50, 2, None); setP(0); call("L_VX")
    nxt(50, 3, None); setP(1); call("L_VY")
    nxt(None, 0, None); setP(2); call("L_VX")
    A("s_mov_b32 s70, 0x40000")
    setP(3); call("L_VY")
    stamp(9)
    call("L_OW")
    A("s_barrier")
    stamp(10)
    call("L_OUT")
    stamp(11)
    stamp_flush()
    A("s_endpgm")

    def reissue(st, k):
        A(f"buffer_load_dwordx4 v[{st+4*k}:{st+4*k+3}], v{vN}, s[44:47], {SOFF[k>>2]} offen offset:{(k&3)*1024} nt")
    def extract(u):
        d = DK[u & 1]
        A(f"v_mov_b32_dpp v{R+u}, v{d} quad_perm:[0,0,0,0] row_mask:0xf bank_mask:0xf")
        for r in range(1, 4):
            A(f"v_add_f32_dpp v{R+u}, v{d+r}, v{R+u} quad_perm:[{r},{r},{r},{r}] row_mask:0xf bank_mask:0xf")
    def krout(name, st):
        A(f"{name}:")
        for u in range(4):
            d = DK[u & 1]
            for t in range(4):
                k = 4 * u + t
                A("s_waitcnt vmcnt(31)")
                c = "0" if t == 0 else f"v[{d}:{d+3}]"
                A(f"v_mfma_f32_16x16x32_bf16 v[{d}:{d+3}], v[{st+4*k}:{st+4*k+3}], v[{Q+4*t}:{Q+4*t+3}], {c}")
                reissue(st, k)
                if t == 2 and u > 0: extract(u - 1)
        A("s_nop 7")
        extract(3)
        A("s_setpc_b64 s[76:77]")
    def vrout(name, st):
        A(f"{name}:")
        A("s_nop 0")
        for k in range(16):
            u, t = k >> 2, k & 3
            a = AOP[k & 1]
            for j in range(4):
                A(f"v_and_b32_dpp v{a+j}, v{R+u}, v{MASK+j} row_newbcast:{4*t} row_mask:0xf bank_mask:0xf")
            if k > 0: reissue(st, k - 1)
            else: A("s_nop 0")
            A("s_waitcnt vmcnt(31)")
            A(f"v_mfma_f32_16x16x32_bf16 v[{O}:{O+3}], v[{a}:{a+3}], v[{st+4*k}:{st+4*k+3}], v[{O}:{O+3}]")
        reissue(st, 15)
        A("s_setpc_b64 s[76:77]")
    vrout("L_VY", Y)
    A("L_OW:")
    A("s_nop 5")
    A(f"v_cvt_pk_bf16_f32 v{OA}, v{O}, v{O+1}"); A(f"v_cvt_pk_bf16_f32 v{OA+1}, v{O+2}, v{O+3}")
    A(f"ds_write_b64 v{vOW}, v[{OA}:{OA+1}]")
    A("s_waitcnt lgkmcnt(0)")
    A("s_setpc_b64 s[76:77]")
    A("L_OUT:")
    for kb in range(4):
        A(f"ds_read_b128 v[{OA+4*kb}:{OA+4*kb+3}], v{vOR} offset:{kb*64}")
    A(f"v_mov_b32 v{DK[0]}, {L_F}")
    A(f"ds_read_b128 v[{F}:{F+3}], v{DK[0]}")
    steps = [(cg, kb) for cg in range(8) for kb in range(4)]
    def trread(n):
        cg, kb = steps[n]
        bt = BT + 4 * (n % NBT)
        for rd in range(2):
            A(f"ds_read_b64_tr_b16 v[{bt+2*rd}:{bt+2*rd+1}], v{TRA + (cg>>1)} offset:{kb*8320 + rd*1024 + (cg&1)*32}")
    PRE = 5
    for n in range(PRE): trread(n)
    nread = PRE
    def fin(cg):
        d = DK[cg & 1]
        for r in range(4):
            A(f"v_fmac_f32_dpp v{T+(cg&3)}, v{d+r}, v{F+r} quad_perm:[0,1,2,3] row_mask:{1<<(cg>>2):#x} bank_mask:0xf")
    for n, (cg, kb) in enumerate(steps):
        d = DK[cg & 1]
        bt = BT + 4 * (n % NBT)
        A(f"s_waitcnt lgkmcnt({2*(nread - n - 1)})")
        c = "0" if kb == 0 else f"v[{d}:{d+3}]"
        A(f"v_mfma_f32_16x16x32_bf16 v[{d}:{d+3}], v[{OA+4*kb}:{OA+4*kb+3}], v[{bt}:{bt+3}], {c}")
        while nread < len(steps) and nread - n - 1 < NBT - 1 and 2 * (nread - n) <= 14:
            trread(nread); nread += 1
        if kb == 3 and cg > 0:
            if n > 24: A("s_nop 1")
            fin(cg - 1)
    A("s_nop 3")
    fin(7)
    for k in range(4): A(f"v_min_u32 v{OA+k}, -2, v{T+k}")
    A(f"buffer_store_dwordx4 v[{OA}:{OA+3}], v{vY}, s[68:71], 0 offen sc1")
    A("s_nop 0")
    A("s_setpc_b64 s[76:77]")
    vrout("L_VX", X)
    krout("L_KX", X)
    krout("L_KY", Y)
    A("L_SM:")
    t0 = OA
    for rnd in range(2):
        for k in range(0, 16, 2):
            A(f"v_cvt_pk_bf16_f32 v{t0+k//2}, v{S+k}, v{S+k+1}")
        for k in range(0, 16, 2):
            A(f"v_lshlrev_b32 v{S+k}, 16, v{t0+k//2}"); A(f"v_and_b32 v{S+k+1}, s67, v{t0+k//2}")
        if rnd == 0:
            for k in range(16): A(f"v_mul_f32 v{S+k}, s65, v{S+k}")
    A(f"v_max3_f32 v{t0}, v{S}, v{S+1}, v{S+2}")
    for k in range(3, 15, 2): A(f"v_max3_f32 v{t0}, v{t0}, v{S+k}, v{S+k+1}")
    A(f"v_max_f32 v{t0}, v{t0}, v{S+15}")
    def wred(op, r):
        for ctl in ("row_ror:4 row_mask:0xf", "row_ror:8 row_mask:0xf", "row_bcast:15 row_mask:0xa", "row_bcast:31 row_mask:0xc"):
            A("s_nop 1"); A(f"{op}_dpp v{r}, v{r}, v{r} {ctl} bank_mask:0xf")
    wred("v_max_f32", t0)
    A("s_nop 1"); A(f"v_readlane_b32 s80, v{t0}, 63")
    A(f"v_mov_b32 v{t0+2}, s66"); A("s_nop 1")
    A(f"v_mul_f32 v{t0+2}, s80, v{t0+2}")
    for k in range(16): A(f"v_fma_f32 v{S+k}, v{S+k}, s66, -v{t0+2}")
    for k in range(16): A(f"v_exp_f32 v{S+k}, v{S+k}")
    A(f"v_add_f32 v{t0+3}, v{S}, v{S+1}")
    for k in range(2, 16): A(f"v_add_f32 v{t0+3}, v{t0+3}, v{S+k}")
    for k in range(16): A(f"v_cvt_pk_bf16_f32 v{S+k}, v{S+k}, v{S+k}")
    wred("v_add_f32", t0 + 3)
    A(f"v_mov_b32 v{t0}, s64")
    A("s_mov_b32 exec_lo, 0"); A("s_mov_b32 exec_hi, 0x80000000")
    A(f"global_store_dwordx2 v{t0}, v[{t0+2}:{t0+3}], s[30:31] sc1")
    A("s_mov_b64 exec, -1")
    A("s_setpc_b64 s[76:77]")

    A("L_comm:")
    A("s_setprio 3")
    WQ = 128
    AOPS = 64
    XV = 20
    SEL = 28
    DQ = 36
    A("v_lshlrev_b32 v1, 17, v16"); A("v_lshl_add_u32 v1, v17, 4, v1")
    A("v_lshrrev_b32 v2, 3, v17"); A("v_lshlrev_b32 v2, 10, v2"); A("v_lshl_add_u32 v2, v16, 5, v2")
    A("s_lshl_b32 s40, s35, 7"); A("v_add_u32 v2, s40, v2")
    A("s_lshl_b32 s40, s35, 19"); A("s_lshl_b32 s41, s34, 8"); A("s_add_u32 s40, s40, s41")
    A("s_mov_b32 s46, 0x80000"); A("s_mov_b32 s47, 0x20000"); A("s_mov_b32 s50, 0x80000"); A("s_mov_b32 s51, 0x20000")
    A("s_mov_b32 s72, 0")
    A("s_waitcnt lgkmcnt(0)")
    stamp(0)
    A(f"global_load_dwordx4 v[{XV}:{XV+3}], v2, s[4:5]"); A(f"global_load_dwordx4 v[{XV+4}:{XV+7}], v2, s[4:5] offset:16")
    A("s_add_u32 s44, s10, s40"); A("s_addc_u32 s45, s11, 0")
    A("s_add_u32 s48, s20, s40"); A("s_addc_u32 s49, s21, 0")
    for t in range(16):
        A(f"buffer_load_dwordx4 v[{WQ+4*t}:{WQ+4*t+3}], v1, s[44:47], s72 offen nt")
        A(f"buffer_load_dwordx4 v[{WQ+64+4*t}:{WQ+64+4*t+3}], v1, s[48:51], s72 offen nt")
        if t < 15: A("s_add_u32 s72, s72, 0x2000")
    A("s_lshl2_add_u32 s41, s34, s37"); A("s_lshl_b32 s41, s41, 6"); A("s_lshl_b32 s42, s36, 18"); A("s_add_u32 s41, s41, s42")
    A(f"s_add_u32 s41, s41, {WS_Y}")
    A("v_lshrrev_b32 v3, 2, v0"); A("v_lshlrev_b32 v3, 13, v3"); A("v_and_b32 v4, 3, v0"); A("v_lshl_add_u32 v3, v4, 4, v3")
    A("v_add_u32 v3, s41, v3"); A("v_add_u32 v5, 0x20000, v3")
    for k in range(4): A(f"v_mov_b32 v{8+k}, -1")
    A("global_store_dwordx4 v3, v[8:11], s[30:31] sc1"); A("global_store_dwordx4 v5, v[8:11], s[30:31] sc1")
    A("s_lshl_b32 s52, s36, 5"); A("s_add_u32 s52, s52, s34"); A("s_lshl_b32 s52, s52, 7"); A(f"s_add_u32 s52, s52, {WS_ML}")
    A("s_lshl_b32 s41, s37, 5"); A("s_add_u32 s41, s41, s52")
    A("v_bfe_u32 v6, v0, 2, 1"); A("v_lshlrev_b32 v6, 13, v6"); A("v_lshl_add_u32 v6, v4, 3, v6"); A("v_add_u32 v6, s41, v6")
    A("v_mov_b32 v12, 0"); A("v_mov_b32 v13, 0")
    A("s_mov_b64 exec, 0xff")
    A("global_store_dwordx2 v6, v[12:13], s[30:31] sc1")
    A("s_mov_b64 exec, -1")
    A("v_lshlrev_b32 v7, 4, v0"); A("s_lshl_b32 s41, s36, 10"); A("v_add_u32 v14, s41, v7")
    A("global_load_dwordx4 v[44:47], v14, s[4:5]"); A("global_load_dwordx4 v[48:51], v7, s[24:25]")
    NLATE = 5
    A("v_and_b32 v8, 1, v17"); A("v_lshlrev_b32 v8, 4, v8")
    A("v_bfe_u32 v9, v17, 1, 2")
    A("v_mov_b32 v15, 0x0c0c0c0c")
    for hs in range(2):
        src = 0x0100 if hs == 0 else 0x0302
        A(f"v_mov_b32 v10, {src ^ 0x0c0c:#x}"); A("v_lshlrev_b32 v10, v8, v10"); A("v_xor_b32 v10, v10, v15")
        for j in range(4):
            A(f"v_cmp_eq_u32 vcc, {j}, v9"); A("s_nop 1"); A(f"v_cndmask_b32 v{SEL+4*hs+j}, v15, v10, vcc")
    A(f"s_waitcnt vmcnt({32 + NLATE})")
    for t in range(16):
        for j in range(4):
            A(f"v_perm_b32 v{AOPS+4*t+j}, v{XV+(t>>1)}, v{XV+(t>>1)}, v{SEL+4*(t&1)+j}")
    for t in range(16):
        for br in range(2):
            A(f"s_waitcnt vmcnt({31 - (2*t+br) + NLATE})")
            d = DQ + 4 * br
            c = "0" if t == 0 else f"v[{d}:{d+3}]"
            w = WQ + 64 * br + 4 * t
            A(f"v_mfma_f32_16x16x32_bf16 v[{d}:{d+3}], v[{AOPS+4*t}:{AOPS+4*t+3}], v[{w}:{w+3}], {c}")
    A("s_lshl3_add_u32 s53, s34, s35")
    A("s_lshl_b32 s41, s53, 11")
    A("v_lshrrev_b32 v3, 1, v16"); A("v_lshlrev_b32 v3, 9, v3"); A("v_lshl_add_u32 v3, v17, 5, v3")
    A("v_and_b32 v5, 1, v16"); A("v_lshl_add_u32 v3, v5, 4, v3"); A("v_add_u32 v3, s41, v3")
    A("v_mov_b32 v5, s53"); A("v_mov_b32 v6, 1")
    A(f"global_store_dwordx4 v3, v[{DQ}:{DQ+3}], s[30:31] sc1")
    A(f"global_store_dwordx4 v3, v[{DQ+4}:{DQ+7}], s[30:31] offset:1024 sc1")
    stamp(1)
    A("s_waitcnt vmcnt(0)")
    A("s_mov_b64 exec, 1")
    A("global_store_byte v5, v6, s[28:29] sc1")
    A("s_mov_b64 exec, -1")
    stamp(2)
    A("s_lshl_b32 s41, s34, 3"); A("v_mov_b32 v5, s41")
    A("global_load_dwordx2 v[8:9], v5, s[28:29] sc1")
    A("s_mov_b32 s67, 0xffff0000")
    for k in range(4):
        A(f"v_lshlrev_b32 v52, 16, v{44+k}"); A(f"v_and_b32 v53, s67, v{44+k}")
        A(f"v_lshlrev_b32 v54, 16, v{48+k}"); A(f"v_and_b32 v55, s67, v{48+k}")
        A("v_mul_f32 v52, v52, v54"); A("v_mul_f32 v53, v53, v55")
        A("v_cvt_pk_bf16_f32 v52, v52, v53")
        A("v_lshlrev_b32 v53, 16, v52"); A("v_and_b32 v52, s67, v52")
        if k == 0: A("v_add_f32 v56, v52, v53")
        else: A("v_add_f32 v56, v56, v52"); A("v_add_f32 v56, v56, v53")
    for ctl in ("row_ror:1 row_mask:0xf", "row_ror:2 row_mask:0xf", "row_ror:4 row_mask:0xf", "row_ror:8 row_mask:0xf", "row_bcast:15 row_mask:0xa", "row_bcast:31 row_mask:0xc"):
        A("s_nop 1"); A(f"v_add_f32_dpp v56, v56, v56 {ctl} bank_mask:0xf")
    A("v_cvt_pk_bf16_f32 v56, v56, v56"); A("v_and_b32 v56, s67, v56")
    A(f"v_mul_f32 v56, {f2u(-1.4426950408889634):#x}, v56"); A("v_exp_f32 v56, v56"); A("s_nop 0")
    A("v_add_f32 v56, 1.0, v56"); A("v_rcp_f32 v56, v56"); A("s_nop 0")
    A("v_cvt_pk_bf16_f32 v56, v56, v56"); A("v_and_b32 v56, s67, v56")
    A("v_sub_f32 v57, 1.0, v56"); A("v_cvt_pk_bf16_f32 v57, v57, v57"); A("v_and_b32 v57, s67, v57")
    A("s_nop 1"); A("v_readlane_b32 s54, v56, 63"); A("v_readlane_b32 s55, v57, 63")
    A("s_lshl_b32 s41, s34, 14"); A("s_lshl_b32 s42, s36, 9"); A("s_add_u32 s41, s41, s42")
    A("v_lshrrev_b32 v3, 5, v0"); A("v_lshlrev_b32 v3, 10, v3"); A("v_and_b32 v4, 31, v0"); A("v_lshl_add_u32 v3, v4, 4, v3")
    A("v_add_u32 v3, s41, v3"); A("v_add_u32 v4, 0x1000, v3"); A("v_add_u32 v6, 0x2000, v3"); A("v_add_u32 v7, 0x3000, v3")
    A(f"s_mov_b32 s90, {spin}")
    A("s_mov_b32 s91, 0x01010101")
    A("L_pq:")
    A("s_waitcnt vmcnt(0)")
    A("v_readfirstlane_b32 s41, v8"); A("v_readfirstlane_b32 s42, v9")
    A("s_nop 0")
    A("s_and_b32 s41, s41, s42"); A("s_cmp_eq_u32 s41, s91"); A("s_cbranch_scc1 L_pq_done")
    A("global_load_dwordx2 v[8:9], v5, s[28:29] sc1")
    A("s_sub_u32 s90, s90, 1"); A("s_cbranch_scc0 L_pq")
    A("L_pq_done:")
    stamp(3)
    for p in range(8):
        a = [3, 4, 6, 7][p >> 1]
        A(f"global_load_dwordx4 v[{64+4*p}:{64+4*p+3}], v{a}, s[30:31] offset:{(p&1)*2048} sc1")
    A(f"v_lshlrev_b32 v5, 3, v0"); A(f"v_add_u32 v5, {L_Q}, v5")
    for p in range(1, 8):
        A(f"s_waitcnt vmcnt({7-p})")
        for k in range(4): A(f"v_add_f32 v{64+k}, v{64+k}, v{64+4*p+k}")
    A("v_cvt_pk_bf16_f32 v64, v64, v65"); A("v_cvt_pk_bf16_f32 v65, v66, v67")
    A("ds_write_b64 v5, v[64:65]")
    A("s_waitcnt lgkmcnt(0)")
    stamp(4)
    A("s_barrier")
    A("s_lshr_b32 s41, s32, 1"); A("s_lshl_b32 s41, s41, 4"); A("s_lshr_b32 s42, s33, 1"); A("s_add_u32 s56, s41, s42")
    A("s_or_b32 s57, s32, s33"); A("s_and_b32 s57, s57, 1")
    A("s_lshl_b32 s41, s56, 13"); A(f"s_add_u32 s41, s41, {WS_Y}")
    A("v_lshlrev_b32 v20, 4, v0"); A("v_add_u32 v20, s41, v20"); A("v_add_u32 v21, 0x1000, v20")
    A("s_lshr_b32 s41, s56, 2"); A("s_lshl_b32 s41, s41, 7"); A("s_and_b32 s42, s56, 3"); A("s_lshl3_add_u32 s41, s42, s41")
    A("v_lshlrev_b32 v22, 5, v16"); A("v_lshl_add_u32 v22, v17, 1, v22"); A("v_add_u32 v22, s41, v22")
    A("v_lshrrev_b32 v23, 2, v17"); A("v_lshl_add_u32 v22, v23, 20, v22")
    A("s_mov_b32 s64, s26"); A("s_mov_b32 s65, s27"); A("s_mov_b32 s66, 0"); A("s_mov_b32 s67, 0x20000")
    A("s_lshl_b32 s41, s34, 17"); A("s_add_u32 s60, s12, s41"); A("s_addc_u32 s61, s13, 0"); A("s_mov_b32 s62, 0x20000"); A("s_mov_b32 s63, 0x20000")
    A("v_lshlrev_b32 v24, 4, v17"); A("v_lshlrev_b32 v25, 6, v16"); A("v_xor_b32 v24, v24, v25"); A("v_lshl_add_u32 v24, v16, 10, v24")
    A("v_lshlrev_b32 v26, 3, v17"); A("v_add_u32 v26, s52, v26"); A("v_add_u32 v26, 0x2000, v26")
    A("v_and_b32 v27, 3, v0"); A(f"v_lshlrev_b32 v27, 2, v27"); A(f"v_add_u32 v27, {L_F}, v27")
    A("s_lshl_b32 s41, s37, 2"); A("s_lshl_b64 s[58:59], 15, s41")
    A("s_mov_b32 s90, 0")
    A("s_call_b64 s[76:77], L_FIN")
    A("s_mov_b32 s68, s55")
    A("s_call_b64 s[76:77], L_ML")
    stamp(5)
    A("s_barrier")
    A("s_barrier")
    stamp(6)
    A("s_mov_b32 s70, 0"); A("s_mov_b32 s71, 0"); A("s_mov_b32 s73, 0")
    A("L_dma:")
    for half in range(2):
        for cw in range(4):
            A(f"s_add_u32 m0, s70, {cw*WO_SLICE + half*1024}")
            A(f"s_add_u32 s72, s71, {cw*256 + half*4096}")
            A(f"s_waitcnt vmcnt({WOA_PACE})")
            A("buffer_load_dwordx4 v24, s[60:63], s72 offen nt lds")
    A("s_add_u32 s70, s70, 2080"); A("s_add_u32 s71, s71, 0x2000")
    A("s_cmp_lt_u32 s71, 0x20000"); A("s_cbranch_scc1 L_dma")
    stamp(7)
    A("v_subrev_u32 v26, 0x2000, v26")
    A("s_mov_b32 s68, s54")
    A("s_call_b64 s[76:77], L_ML")
    stamp(8)
    A("v_lshlrev_b32 v5, 2, v0"); A(f"s_mov_b32 s90, {spin}"); A("v_mov_b32 v9, s91")
    A("L_pa:")
    A("global_load_dword v8, v5, s[28:29] sc1")
    A("s_waitcnt vmcnt(0)")
    A("v_cmp_ne_u32 vcc, v8, v9"); A("s_nop 1")
    A("s_cmp_eq_u64 vcc, 0"); A("s_cbranch_scc1 L_pa_done")
    A("s_sub_u32 s90, s90, 1"); A("s_cbranch_scc0 L_pa")
    A("L_pa_done:")
    A("s_movk_i32 s66, 0x800"); A(f"s_mov_b32 s90, {spin}")
    stamp(9)
    A("s_barrier")
    stamp(10)
    A("s_cmp_lg_u32 s57, 0"); A("s_cbranch_scc1 L_cend")
    A("s_call_b64 s[76:77], L_FIN")
    stamp(11)
    A("L_cend:")
    stamp_flush()
    A("L_end:")
    A("s_endpgm")
    A("L_FIN:")
    for t in range(8):
        A(f"global_load_dwordx4 v[{64+4*t}:{64+4*t+3}], v{20+(t>>2)}, s[30:31] offset:{(t&3)*1024} sc1")
    for t in range(8):
        A(f"s_waitcnt vmcnt({7-t})")
        b = 64 + 4 * t
        if t == 0:
            A(f"v_max3_u32 v8, v{b}, v{b+1}, v{b+2}"); A(f"v_max_u32 v8, v8, v{b+3}")
        else:
            A(f"v_max3_u32 v8, v8, v{b}, v{b+1}"); A(f"v_max3_u32 v8, v8, v{b+2}, v{b+3}")
            A(f"v_pk_add_f32 v[64:65], v[64:65], v[{b}:{b+1}]"); A(f"v_pk_add_f32 v[66:67], v[66:67], v[{b+2}:{b+3}]")
    A("v_cmp_eq_u32 vcc, -1, v8"); A("s_nop 1")
    A("s_cmp_eq_u64 vcc, 0"); A("s_cbranch_scc1 L_fin_ok")
    A("s_sub_u32 s90, s90, 1"); A("s_cbranch_scc0 L_FIN")
    A("L_fin_ok:")
    A("v_permlane32_swap_b32 v64, v66"); A("v_permlane32_swap_b32 v65, v67")
    A("v_add_f32 v64, v64, v66"); A("v_add_f32 v65, v65, v67"); A("s_nop 1")
    A("v_permlane16_swap_b32 v64, v65")
    A("v_add_f32 v64, v64, v65"); A("s_nop 1")
    A("v_add_f32_dpp v64, v64, v64 row_ror:4 row_mask:0xf bank_mask:0xf"); A("s_nop 1")
    A("v_add_f32_dpp v64, v64, v64 row_ror:8 row_mask:0xf bank_mask:0xf")
    A("v_cvt_pk_bf16_f32 v64, v64, v64")
    A("buffer_store_short v64, v22, s[64:67], 0 offen")
    A("s_setpc_b64 s[76:77]")
    A("L_ML:")
    A(f"s_mov_b32 s90, {spin}")
    A("L_ml_poll:")
    A("global_load_dwordx2 v[8:9], v26, s[30:31] sc1")
    A("s_waitcnt vmcnt(0)")
    A("v_cmp_eq_u32 vcc, 0, v9"); A("s_nop 1")
    A("s_cmp_eq_u64 vcc, 0"); A("s_cbranch_scc1 L_ml_ok")
    A("s_sleep 4")
    A("s_sub_u32 s90, s90, 1"); A("s_cbranch_scc0 L_ml_poll")
    A("L_ml_ok:")
    A("v_mov_b32 v10, v8")
    for r in (1, 2, 4, 8):
        A("s_nop 1"); A(f"v_max_f32_dpp v10, v10, v10 row_ror:{r} row_mask:0xf bank_mask:0xf")
    A("v_sub_f32 v8, v8, v10"); A("v_exp_f32 v8, v8"); A("s_nop 0")
    A("v_mul_f32 v9, v9, v8")
    for r in (1, 2, 4, 8):
        A("s_nop 1"); A(f"v_add_f32_dpp v9, v9, v9 row_ror:{r} row_mask:0xf bank_mask:0xf")
    A("v_rcp_f32 v9, v9"); A("v_mul_f32 v8, s68, v8"); A("v_mul_f32 v8, v8, v9")
    A("s_mov_b64 exec, s[58:59]")
    A("ds_write_b32 v27, v8")
    A("s_mov_b64 exec, -1")
    A("s_waitcnt lgkmcnt(0)")
    A("s_setpc_b64 s[76:77]")

    A('.section .rodata,"a"'); A(".p2align 6"); A(f".amdhsa_kernel {KN}")
    A("  .amdhsa_next_free_vgpr 256"); A("  .amdhsa_next_free_sgpr 100"); A("  .amdhsa_accum_offset 256")
    A("  .amdhsa_group_segment_fixed_size 0"); A("  .amdhsa_kernarg_size 112"); A("  .amdhsa_user_sgpr_count 2")
    A("  .amdhsa_user_sgpr_kernarg_segment_ptr 1"); A("  .amdhsa_system_sgpr_workgroup_id_x 1")
    A("  .amdhsa_float_denorm_mode_32 3")
    A(".end_amdhsa_kernel")
    open(path, "w").write("\n".join(L) + "\n")

if __name__ == "__main__":
    gen(sys.argv[1], stamps=(len(sys.argv) > 2 and sys.argv[2] == "st"))
```

```python
import sys, struct
KN = "gated_mix__gqa_block_cached__sliding_block_cached__decode_kernel"

def f2u(x): return struct.unpack("<I", struct.pack("<f", x))[0]

HEADER = open("gated_mix__gqa_block_cached__sliding_block_cached__decode.s.ref").read().split("; Override launch")[0] \
    if False else ""

WS_QP = 0x0
WS_ML = 0x80000
WS_FL = 0x90000
WS_E  = 0x98000
WS_CC = 0xA0000
WS_Y  = 0x100000
WS_ST = 0x200000
L_WO = 0
WO_SLICE = 33280
L_O = 4 * WO_SLICE
O_ROW = 576
L_Q = L_O + 8 * O_ROW
L_M = L_Q + 512
L_P = L_M + 128
LDS_BYTES = L_P + 16

def gen(path, stamps=False, PACE=9, spin=40000, fill_first=True, comm_prio=3, no_wo=False, no_dry=False, mlsleep=4, klin=False, no_clear=False, comm_off=0, no_sm=False, no_out=False, no_kl=False, finsleep=0, WSB=0, qsleep=0):
    L = []
    A = L.append
    nstamp = [0]
    def stamp(k):
        if stamps:
            A("s_memrealtime s[96:97]"); A("s_waitcnt lgkmcnt(0)"); A(f"v_writelane_b32 v19, s96, {k}")
    def stamp_flush():
        if stamps:
            A("s_lshl_b32 s96, s2, 3"); A("s_add_u32 s96, s96, s38"); A("s_lshl_b32 s96, s96, 8"); A(f"s_add_u32 s96, s96, {WS_ST}")
            A("s_getreg_b32 s97, hwreg(HW_REG_XCC_ID)"); A("v_writelane_b32 v19, s97, 63")
            A("v_lshlrev_b32 v18, 2, v0"); A("v_add_u32 v18, s96, v18")
            A("global_store_dword v18, v19, s[30:31]")

    A(f"; @launch grid=(256,1,1) block=(320,1,1) lds={LDS_BYTES}")
    A('.amdgcn_target "amdgcn-amd-amdhsa--gfx950"')
    A(".text"); A(f".globl {KN}"); A(".p2align 8"); A(f".type {KN},@function"); A(f"{KN}:")
    A("s_cmp_ge_u32 s2, 256"); A("s_cbranch_scc1 L_end")
    A("s_load_dwordx16 s[4:19], s[0:1], 0")
    A("s_load_dwordx8 s[20:27], s[0:1], 64")
    A("s_load_dwordx4 s[28:31], s[0:1], 96")
    A("v_lshrrev_b32 v1, 6, v0")
    A("s_and_b32 s32, s2, 7"); A("s_lshr_b32 s33, s2, 3")
    A("v_readfirstlane_b32 s38, v1")
    A("v_and_b32 v0, 63, v0")
    A("s_lshr_b32 s34, s33, 3"); A("s_lshl2_add_u32 s34, s32, s34")
    A("s_and_b32 s35, s33, 7")
    A("s_lshr_b32 s36, s35, 2")
    A("s_and_b32 s37, s35, 3")
    A("v_lshrrev_b32 v16, 4, v0")
    A("v_and_b32 v17, 15, v0")
    if stamps:
        A("v_mov_b32 v19, 0")
    A("s_cmp_lg_u32 s38, 0"); A("s_cbranch_scc1 L_comp")

    A(f"s_setprio {comm_prio}")
    if comm_off == 1:
        A("s_waitcnt lgkmcnt(0)"); stamp(0)
        A("s_barrier"); A("s_barrier"); A("s_barrier"); stamp(10); stamp_flush(); A("s_endpgm")
    WQ = 128
    AOPS = 64
    XV = 20
    SEL = 28
    DQ = 36
    A("v_lshlrev_b32 v1, 17, v16"); A("v_lshl_add_u32 v1, v17, 4, v1")
    A("v_lshrrev_b32 v2, 3, v17"); A("v_lshlrev_b32 v2, 10, v2"); A("v_lshl_add_u32 v2, v16, 5, v2")
    A("s_lshl_b32 s40, s35, 7"); A("v_add_u32 v2, s40, v2")
    A("s_lshl_b32 s40, s35, 19"); A("s_lshl_b32 s41, s34, 8"); A("s_add_u32 s40, s40, s41")
    A("s_mov_b32 s46, 0x80000"); A("s_mov_b32 s47, 0x20000"); A("s_mov_b32 s50, 0x80000"); A("s_mov_b32 s51, 0x20000")
    A("s_mov_b32 s72, 0")
    A("s_waitcnt lgkmcnt(0)")
    if WSB: A(f"s_add_u32 s30, s30, {WSB}"); A("s_addc_u32 s31, s31, 0")
    stamp(0)
    A(f"global_load_dwordx4 v[{XV}:{XV+3}], v2, s[4:5]"); A(f"global_load_dwordx4 v[{XV+4}:{XV+7}], v2, s[4:5] offset:16")
    A(f"s_load_dwordx2 s[92:93], s[30:31], {WS_E}")
    A("s_add_u32 s44, s10, s40"); A("s_addc_u32 s45, s11, 0")
    A("s_add_u32 s48, s20, s40"); A("s_addc_u32 s49, s21, 0")
    for t in range(16):
        A(f"buffer_load_dwordx4 v[{WQ+4*t}:{WQ+4*t+3}], v1, s[44:47], s72 offen nt")
        A(f"buffer_load_dwordx4 v[{WQ+64+4*t}:{WQ+64+4*t+3}], v1, s[48:51], s72 offen nt")
        if t < 15: A("s_add_u32 s72, s72, 0x2000")
    if comm_off == 2:
        A("s_waitcnt vmcnt(0)"); stamp(1)
        A("s_barrier"); A("s_barrier"); A("s_barrier"); stamp(10); stamp_flush(); A("s_endpgm")
    A("s_lshr_b32 s41, s32, 1"); A("s_lshl_b32 s41, s41, 4"); A("s_lshr_b32 s42, s33, 1"); A("s_add_u32 s56, s41, s42")
    A("s_or_b32 s57, s32, s33"); A("s_and_b32 s57, s57, 1")
    A("s_lshl_b32 s41, s56, 13"); A(f"s_add_u32 s41, s41, {WS_Y}")
    A("s_add_u32 s60, s30, s41"); A("s_addc_u32 s61, s31, 0"); A("s_mov_b32 s63, 0x20000")
    A("s_cmp_eq_u32 s57, 0"); A("s_cselect_b32 s62, 0x2000, 0")
    A("v_lshlrev_b32 v60, 4, v0"); A("s_movk_i32 s73, 0x1000")
    for k in range(4): A(f"v_mov_b32 v{8+k}, -1")
    for t in range(8):
        A(f"buffer_store_dwordx4 v[8:11], v60, s[60:63], {'s73' if t >= 4 else '0'} offen offset:{(t&3)*1024} sc1")
    A("s_lshl_b32 s52, s36, 5"); A("s_add_u32 s52, s52, s34"); A("s_lshl_b32 s52, s52, 7"); A(f"s_add_u32 s52, s52, {WS_ML}")
    A("s_lshl4_add_u32 s41, s37, s52"); A("v_mov_b32 v61, s41")
    for k in range(4): A(f"v_mov_b32 v{12+k}, 0")
    A("s_mov_b64 exec, 1")
    A("global_store_dwordx4 v61, v[12:15], s[30:31] sc1")
    A("s_mov_b64 exec, -1")
    A("v_lshlrev_b32 v3, 2, v0"); A(f"v_add_u32 v3, {L_M}, v3")
    A("v_mov_b32 v4, 0"); A("v_writelane_b32 v4, 1.0, 24")
    A("s_mov_b32 exec_hi, 0xf")
    A("ds_write_b32 v3, v4")
    A("s_mov_b64 exec, -1")
    A("s_lshl_b32 s41, s36, 10"); A("v_add_u32 v7, s41, v60")
    A("global_load_dwordx4 v[44:47], v7, s[4:5]"); A("global_load_dwordx4 v[48:51], v60, s[24:25]")
    NLATE = 11
    A("v_and_b32 v8, 1, v17"); A("v_lshlrev_b32 v8, 4, v8")
    A("v_bfe_u32 v9, v17, 1, 2")
    A("v_mov_b32 v15, 0x0c0c0c0c")
    for hs in range(2):
        src = 0x0100 if hs == 0 else 0x0302
        A(f"v_mov_b32 v10, {src ^ 0x0c0c:#x}"); A("v_lshlrev_b32 v10, v8, v10"); A("v_xor_b32 v10, v10, v15")
        for j in range(4):
            A(f"v_cmp_eq_u32 vcc, {j}, v9"); A("s_nop 1"); A(f"v_cndmask_b32 v{SEL+4*hs+j}, v15, v10, vcc")
    A(f"s_waitcnt vmcnt({32 + NLATE})")
    for t in range(16):
        for j in range(4):
            A(f"v_perm_b32 v{AOPS+4*t+j}, v{XV+(t>>1)}, v{XV+(t>>1)}, v{SEL+4*(t&1)+j}")
    for t in range(16):
        for br in range(2):
            A(f"s_waitcnt vmcnt({31 - (2*t+br) + NLATE})")
            d = DQ + 4 * br
            c = "0" if t == 0 else f"v[{d}:{d+3}]"
            w = WQ + 64 * br + 4 * t
            A(f"v_mfma_f32_16x16x32_bf16 v[{d}:{d+3}], v[{AOPS+4*t}:{AOPS+4*t+3}], v[{w}:{w+3}], {c}")
    A("s_lshl3_add_u32 s53, s34, s35")
    A("s_lshl_b32 s41, s53, 11")
    A("v_lshrrev_b32 v3, 1, v16"); A("v_lshlrev_b32 v3, 9, v3"); A("v_lshl_add_u32 v3, v17, 5, v3")
    A("v_and_b32 v5, 1, v16"); A("v_lshl_add_u32 v3, v5, 4, v3"); A("v_add_u32 v3, s41, v3")
    A("s_waitcnt lgkmcnt(0)")
    A("s_mul_i32 s92, s92, 0x9e3779b1"); A("s_add_u32 s92, s92, 0x7f4a7c15")
    A("s_mul_i32 s93, s93, 0x85ebca6d"); A("s_add_u32 s93, s93, 0x2545f491")
    A("s_lshl_b32 s41, s34, 7"); A(f"s_add_u32 s41, s41, {WS_FL}"); A("s_lshl3_add_u32 s42, s35, s41")
    A("s_lshl_b32 s43, s56, 3"); A(f"s_add_u32 s43, s43, {WS_CC}")
    A("v_lshlrev_b32 v5, 9, v0"); A("v_add_u32 v5, s43, v5"); A("v_writelane_b32 v5, s42, 8")
    A("s_cmp_eq_u32 s57, 0"); A("s_cselect_b32 s43, 0xff, 0"); A("s_bitset1_b32 s43, 8")
    A("v_mov_b32 v6, s92"); A("v_mov_b32 v7, s93")
    A(f"global_store_dwordx4 v3, v[{DQ}:{DQ+3}], s[30:31] sc1")
    A(f"global_store_dwordx4 v3, v[{DQ+4}:{DQ+7}], s[30:31] offset:1024 sc1")
    stamp(1)
    A("s_waitcnt vmcnt(0)")
    A("s_mov_b32 exec_lo, s43"); A("s_mov_b32 exec_hi, 0")
    A("global_store_dwordx2 v5, v[6:7], s[30:31] sc1")
    A("s_mov_b64 exec, -1")
    stamp(2)
    A("v_lshlrev_b32 v5, 4, v0"); A("v_add_u32 v5, s41, v5")
    A("s_mov_b32 s67, 0xffff0000")
    for k in range(4):
        A(f"v_lshlrev_b32 v52, 16, v{44+k}"); A(f"v_and_b32 v53, s67, v{44+k}")
        A(f"v_lshlrev_b32 v54, 16, v{48+k}"); A(f"v_and_b32 v55, s67, v{48+k}")
        A("v_mul_f32 v52, v52, v54"); A("v_mul_f32 v53, v53, v55")
        A("v_cvt_pk_bf16_f32 v52, v52, v53")
        A("v_lshlrev_b32 v53, 16, v52"); A("v_and_b32 v52, s67, v52")
        if k == 0: A("v_add_f32 v56, v52, v53")
        else: A("v_add_f32 v56, v56, v52"); A("v_add_f32 v56, v56, v53")
    for ctl in ("row_ror:1 row_mask:0xf", "row_ror:2 row_mask:0xf", "row_ror:4 row_mask:0xf", "row_ror:8 row_mask:0xf", "row_bcast:15 row_mask:0xa", "row_bcast:31 row_mask:0xc"):
        A("s_nop 1"); A(f"v_add_f32_dpp v56, v56, v56 {ctl} bank_mask:0xf")
    A("v_cvt_pk_bf16_f32 v56, v56, v56"); A("v_and_b32 v56, s67, v56")
    A(f"v_mul_f32 v56, {f2u(-1.4426950408889634):#x}, v56"); A("v_exp_f32 v56, v56"); A("s_nop 0")
    A("v_add_f32 v56, 1.0, v56"); A("v_rcp_f32 v56, v56"); A("s_nop 0")
    A("v_cvt_pk_bf16_f32 v56, v56, v56"); A("v_and_b32 v56, s67, v56")
    A("v_sub_f32 v57, 1.0, v56"); A("v_cvt_pk_bf16_f32 v57, v57, v57"); A("v_and_b32 v57, s67, v57")
    A("s_nop 1"); A("v_readlane_b32 s54, v56, 63"); A("v_readlane_b32 s55, v57, 63")
    A("s_lshl_b32 s41, s34, 14"); A("s_lshl_b32 s42, s36, 9"); A("s_add_u32 s41, s41, s42")
    A("v_lshrrev_b32 v3, 5, v0"); A("v_lshlrev_b32 v3, 10, v3"); A("v_and_b32 v4, 31, v0"); A("v_lshl_add_u32 v3, v4, 4, v3")
    A("v_add_u32 v3, s41, v3"); A("v_add_u32 v4, 0x1000, v3"); A("v_add_u32 v6, 0x2000, v3"); A("v_add_u32 v7, 0x3000, v3")
    A(f"s_mov_b32 s90, {spin}")
    A("s_mov_b64 exec, 0xf")
    if qsleep: A(f"s_sleep {qsleep}")
    A("L_pq:")
    A("global_load_dwordx4 v[8:11], v5, s[30:31] sc1")
    A("s_waitcnt vmcnt(0)")
    for k in range(4): A(f"v_xor_b32 v{8+k}, s{92+(k&1)}, v{8+k}")
    A("v_or3_b32 v8, v8, v9, v10"); A("v_or_b32 v8, v8, v11")
    A("v_cmp_ne_u32 vcc, 0, v8"); A("s_nop 1")
    A("s_cmp_eq_u64 vcc, 0"); A("s_cbranch_scc1 L_pq_done")
    A("s_sub_u32 s90, s90, 1"); A("s_cbranch_scc0 L_pq")
    A("L_pq_done:")
    A("s_mov_b64 exec, -1")
    stamp(3)
    for p in range(8):
        a = [3, 4, 6, 7][p >> 1]
        A(f"global_load_dwordx4 v[{64+4*p}:{64+4*p+3}], v{a}, s[30:31] offset:{(p&1)*2048} sc1")
    A(f"v_lshlrev_b32 v5, 3, v0"); A(f"v_add_u32 v5, {L_Q}, v5")
    for p in range(1, 8):
        A(f"s_waitcnt vmcnt({7-p})")
        for k in range(4): A(f"v_add_f32 v{64+k}, v{64+k}, v{64+4*p+k}")
    A("v_cvt_pk_bf16_f32 v64, v64, v65"); A("v_cvt_pk_bf16_f32 v65, v66, v67")
    A("ds_write_b64 v5, v[64:65]")
    A("s_waitcnt lgkmcnt(0)")
    stamp(4)
    A("s_barrier")
    if comm_off == 3:
        A("s_barrier"); A("s_barrier"); stamp(10); stamp_flush(); A("s_endpgm")
    if comm_off == 3:
        A("s_barrier"); A("s_barrier"); stamp(10); stamp_flush(); A("s_endpgm")
    A("s_mov_b32 s62, 0"); A("v_mov_b32 v20, v60"); A("s_movk_i32 s72, 0x1000")
    A("s_lshr_b32 s41, s56, 2"); A("s_lshl_b32 s41, s41, 7"); A("s_and_b32 s42, s56, 3"); A("s_lshl3_add_u32 s41, s42, s41")
    A("v_lshlrev_b32 v22, 5, v16"); A("v_lshl_add_u32 v22, v17, 1, v22"); A("v_add_u32 v22, s41, v22")
    A("v_lshrrev_b32 v23, 2, v17"); A("v_lshl_add_u32 v22, v23, 20, v22")
    A("s_mov_b32 s64, s26"); A("s_mov_b32 s65, s27"); A("s_mov_b32 s66, 0"); A("s_mov_b32 s67, 0x20000")
    A("s_cmp_lg_u32 s57, 0"); A("s_cbranch_scc1 L_nodry")
    if not no_dry:
        A("s_mov_b32 s90, 0")
        A("s_call_b64 s[76:77], L_FIN")
    A("L_nodry:")
    A("s_lshl_b32 s41, s32, 9"); A("s_lshl_b32 s42, s36, 8"); A("s_add_u32 s41, s41, s42"); A(f"s_add_u32 s41, s41, {WS_CC - 256}")
    A("v_mov_b32 v26, s41"); A("v_mov_b32 v27, s52")
    A("v_cmp_gt_u32 vcc, 16, v0"); A("s_nop 1"); A("v_cndmask_b32 v26, v26, v27, vcc"); A("v_add_u32 v26, v26, v60")
    A("v_and_b32 v27, 3, v0"); A("v_lshlrev_b32 v27, 2, v27"); A(f"v_add_u32 v27, {L_M}, v27")
    A(f"v_mov_b32 v28, {L_M}")
    stamp(5)
    A("s_barrier")
    stamp(6)
    A(f"s_mov_b32 s90, {spin*20}")
    A("L_wl:")
    A("s_sleep 2")
    A("ds_read_b32 v9, v27 offset:16")
    A("s_waitcnt lgkmcnt(0)")
    A("v_cmp_eq_u32 vcc, 0, v9"); A("s_nop 1")
    A("s_cmp_eq_u64 vcc, 0"); A("s_cbranch_scc1 L_wl_ok")
    A("s_sub_u32 s90, s90, 1"); A("s_cbranch_scc0 L_wl")
    A("L_wl_ok:")
    A("ds_read_b32 v8, v27"); A("ds_read_b32 v10, v27 offset:64"); A("ds_read_b32 v11, v27 offset:80")
    A("s_waitcnt lgkmcnt(0)")
    A("s_call_b64 s[76:77], L_QC")
    A("s_mov_b64 exec, 1")
    A("global_store_dwordx4 v61, v[12:15], s[30:31] sc1")
    A("s_mov_b64 exec, -1")
    stamp(7)
    A(f"s_mov_b32 s90, {spin*20}")
    A("L_wp:")
    A("s_sleep 2")
    A("ds_read_b32 v9, v28 offset:128")
    A("s_waitcnt lgkmcnt(0)")
    A("v_readfirstlane_b32 s41, v9"); A("s_nop 1")
    A("s_cmp_lg_u32 s41, 0"); A("s_cbranch_scc1 L_wp_ok")
    A("s_sub_u32 s90, s90, 1"); A("s_cbranch_scc0 L_wp")
    A("L_wp_ok:")
    A(f"s_mov_b32 s90, {spin}")
    A("L_ml:")
    A("s_mov_b32 exec_lo, 0xffff000f"); A("s_mov_b32 exec_hi, 0")
    A("global_load_dwordx4 v[8:11], v26, s[30:31] sc1")
    A("s_waitcnt vmcnt(0)")
    A("v_min_u32 v12, v9, v11"); A("v_cmp_eq_u32 s[40:41], 0, v12")
    A("v_xor_b32 v12, s92, v8"); A("v_xor_b32 v13, s93, v9"); A("v_xor_b32 v14, s92, v10"); A("v_xor_b32 v15, s93, v11")
    A("v_or3_b32 v12, v12, v13, v14"); A("v_or_b32 v12, v12, v15")
    A("v_cmp_ne_u32 vcc, 0, v12")
    A("s_mov_b64 exec, -1")
    A("s_and_b32 s40, s40, 0xf"); A("s_and_b32 s41, vcc_lo, 0xffff0000"); A("s_or_b32 s40, s40, s41")
    A("s_cbranch_scc0 L_ml_ok")
    A(f"s_sleep {mlsleep}")
    A("s_sub_u32 s90, s90, 1"); A("s_cbranch_scc0 L_ml")
    A("L_ml_ok:")
    A("s_call_b64 s[76:77], L_QC")
    A("v_rcp_f32 v13, v13"); A("v_rcp_f32 v15, v15")
    A("v_mul_f32 v8, s54, v8"); A("v_mul_f32 v10, s55, v10")
    A("v_mul_f32 v8, v8, v13"); A("v_mul_f32 v9, v10, v15")
    A("s_lshl_b64 exec, 1, s37")
    A("ds_write_b64 v28, v[8:9] offset:32")
    A("s_mov_b64 exec, -1")
    A("s_waitcnt lgkmcnt(0)")
    stamp(8)
    A("s_movk_i32 s66, 0x800"); A("s_movk_i32 s62, 0x2000"); A(f"s_mov_b32 s90, {spin}")
    stamp(9)
    A("s_barrier")
    stamp(10)
    A("s_cmp_lg_u32 s57, 0"); A("s_cbranch_scc1 L_cend")
    A("s_call_b64 s[76:77], L_FIN")
    stamp(11)
    A("s_cmp_lg_u32 s56, 0"); A("s_cbranch_scc1 L_cend")
    A(f"v_mov_b32 v5, {WS_E}"); A("v_mov_b32 v6, s92"); A("v_mov_b32 v7, s93")
    A("s_mov_b64 exec, 1")
    A("global_store_dwordx2 v5, v[6:7], s[30:31]")
    A("s_mov_b64 exec, -1")
    A("L_cend:")
    stamp_flush()
    A("L_end:")
    A("s_endpgm")
    A("L_FIN:")
    MK = 4
    for t in range(8): A(f"s_mov_b64 s[{MK+2*t}:{MK+2*t+1}], -1")
    A("L_fin_poll:")
    for t in range(8):
        A(f"s_mov_b64 exec, s[{MK+2*t}:{MK+2*t+1}]")
        A(f"buffer_load_dwordx4 v[{64+4*t}:{64+4*t+3}], v20, s[60:63], {'s72' if t >= 4 else '0'} offen offset:{(t&3)*1024} sc1")
    A("s_mov_b64 exec, -1")
    for t in range(8):
        A(f"s_waitcnt vmcnt({7-t})")
        b = 64 + 4 * t
        A(f"v_max3_u32 v8, v{b}, v{b+1}, v{b+2}"); A(f"v_max_u32 v8, v8, v{b+3}")
        A(f"v_cmp_eq_u32 s[{MK+2*t}:{MK+2*t+1}], -1, v8")
        if t == 1: A(f"v_pk_add_f32 v[96:97], v[64:65], v[68:69]"); A(f"v_pk_add_f32 v[98:99], v[66:67], v[70:71]")
        if t > 1: A(f"v_pk_add_f32 v[96:97], v[96:97], v[{b}:{b+1}]"); A(f"v_pk_add_f32 v[98:99], v[98:99], v[{b+2}:{b+3}]")
        if t == 2: A(f"s_or_b64 s[70:71], s[{MK}:{MK+1}], s[{MK+2}:{MK+3}]")
        if t > 2: A(f"s_or_b64 s[70:71], s[70:71], s[{MK+2*t-2}:{MK+2*t-1}]")
    A(f"s_or_b64 s[70:71], s[70:71], s[{MK+14}:{MK+15}]")
    A("s_cbranch_scc0 L_fin_ok")
    if finsleep: A(f"s_sleep {finsleep}")
    A("s_sub_u32 s90, s90, 1"); A("s_cbranch_scc0 L_fin_poll")
    A("L_fin_ok:")
    A("v_permlane32_swap_b32 v96, v98"); A("v_permlane32_swap_b32 v97, v99")
    A("v_add_f32 v96, v96, v98"); A("v_add_f32 v97, v97, v99"); A("s_nop 1")
    A("v_permlane16_swap_b32 v96, v97")
    A("v_add_f32 v96, v96, v97"); A("s_nop 1")
    A("v_add_f32_dpp v96, v96, v96 row_ror:4 row_mask:0xf bank_mask:0xf"); A("s_nop 1")
    A("v_add_f32_dpp v96, v96, v96 row_ror:8 row_mask:0xf bank_mask:0xf")
    A("v_cvt_pk_bf16_f32 v96, v96, v96")
    A("buffer_store_short v96, v22, s[64:67], 0 offen")
    A("s_setpc_b64 s[76:77]")
    A("L_QC:")
    A("v_mov_b32 v12, v8"); A("v_mov_b32 v14, v10")
    for qp in ("[1,0,3,2]", "[2,3,0,1]"):
        A("s_nop 0")
        A(f"v_max_f32_dpp v12, v12, v12 quad_perm:{qp} row_mask:0xf bank_mask:0xf")
        A(f"v_max_f32_dpp v14, v14, v14 quad_perm:{qp} row_mask:0xf bank_mask:0xf")
    A("v_sub_f32 v8, v8, v12"); A("v_sub_f32 v10, v10, v14")
    A("v_exp_f32 v8, v8"); A("v_exp_f32 v10, v10"); A("s_nop 0")
    A("v_mul_f32 v13, v9, v8"); A("v_mul_f32 v15, v11, v10")
    for qp in ("[1,0,3,2]", "[2,3,0,1]"):
        A("s_nop 0")
        A(f"v_add_f32_dpp v13, v13, v13 quad_perm:{qp} row_mask:0xf bank_mask:0xf")
        A(f"v_add_f32_dpp v15, v15, v15 quad_perm:{qp} row_mask:0xf bank_mask:0xf")
    A("s_setpc_b64 s[76:77]")

    vK, vV, vN, vW = 1, 2, 3, 4
    MASK = 5
    vOW, vOR = 9, 10
    TRA = 11
    vY, vQ = 15, 18
    if stamps: vQ = 100
    Q = 20
    S = 36
    R = 52
    AOP = [56, 60]
    DK = [64, 68]
    O = 72
    T = 76
    F = 80
    OA = 84
    BT = 100
    if stamps: BT = 104
    NBT = (128 - BT) // 4
    X, Y = 128, 192

    A("L_comp:")
    A("s_sub_u32 s39, s38, 1")
    A("s_lshl_b32 s40, s36, 5"); A("s_add_u32 s40, s40, s34"); A("s_lshl_b32 s40, s40, 20")
    A("s_lshl_b32 s41, s39, 14"); A("s_add_u32 s40, s40, s41")
    A("s_lshl_b32 s41, s37, 16"); A("s_add_u32 s41, s41, s40"); A(f"s_add_u32 s41, s41, {3072*256}")
    A(f"v_lshrrev_b32 v{vK}, 2, v17"); A(f"v_lshlrev_b32 v{vK}, 8, v{vK}")
    A(f"v_lshl_add_u32 v{vK}, v16, 6, v{vK}")
    A(f"v_and_b32 v{vN}, 3, v0"); A(f"v_lshl_add_u32 v{vK}, v{vN}, 4, v{vK}")
    A(f"v_lshlrev_b32 v{vV}, 4, v0")
    if klin: A(f"v_mov_b32 v{vK}, v{vV}")
    A(f"v_lshlrev_b32 v{vW}, 4, v17"); A(f"v_lshlrev_b32 v{vN}, 6, v16"); A(f"v_xor_b32 v{vW}, v{vW}, v{vN}")
    A(f"v_lshl_add_u32 v{vW}, v16, 10, v{vW}")
    A("s_movk_i32 s72, 0x1000"); A("s_movk_i32 s73, 0x2000"); A("s_movk_i32 s74, 0x3000")
    A("s_movk_i32 s54, 0x4000"); A("s_mov_b32 s55, 0x20000")
    A("s_movk_i32 s58, 0x4000"); A("s_mov_b32 s59, 0x20000")
    A(f"s_mov_b32 s62, {0 if no_wo else 0x20000}"); A("s_mov_b32 s63, 0x20000")
    A("s_lshl_b32 s42, s34, 17"); A("s_lshl_b32 s43, s39, 8"); A("s_add_u32 s42, s42, s43")
    A(f"s_mul_i32 s79, s39, {WO_SLICE}")
    A("s_mov_b32 s78, 0")
    A("s_waitcnt lgkmcnt(0)")
    if WSB: A(f"s_add_u32 s30, s30, {WSB}"); A("s_addc_u32 s31, s31, 0")
    stamp(0)
    A("s_add_u32 s52, s16, s41"); A("s_addc_u32 s53, s17, 0")
    A("s_add_u32 s56, s18, s41"); A("s_addc_u32 s57, s19, 0")
    A("s_add_u32 s60, s22, s42"); A("s_addc_u32 s61, s23, 0")
    SOFF = ["0", "s72", "s73", "s74"]
    fill = []
    Fm = fill.append
    Fm("s_lshl_b32 s41, s37, 18"); Fm("s_add_u32 s41, s41, s40")
    Fm("s_add_u32 s48, s6, s41"); Fm("s_addc_u32 s49, s7, 0")
    Fm("s_add_u32 s50, s8, s41"); Fm("s_addc_u32 s51, s9, 0")
    Fm("s_movk_i32 s46, 0x4000"); Fm("s_mov_b32 s47, 0x20000")
    Fm(f"v_and_b32 v{OA}, 1, v17"); Fm(f"v_lshlrev_b32 v{OA}, 4, v{OA}"); Fm(f"v_mov_b32 v{OA+1}, 0xffff")
    Fm(f"v_lshlrev_b32 v{OA}, v{OA}, v{OA+1}")
    Fm(f"v_lshrrev_b32 v{OA+1}, 1, v17")
    for j in range(4):
        Fm(f"v_cmp_eq_u32 vcc, {j}, v{OA+1}"); Fm("s_nop 1"); Fm(f"v_cndmask_b32 v{MASK+j}, 0, v{OA}, vcc")
    Fm(f"s_mul_i32 s43, s39, {O_ROW}"); Fm(f"s_add_u32 s43, s43, {L_O}")
    Fm(f"v_lshrrev_b32 v{vOW}, 1, v16"); Fm(f"v_lshlrev_b32 v{vOW}, 8, v{vOW}"); Fm(f"v_lshl_add_u32 v{vOW}, v17, 4, v{vOW}")
    Fm(f"v_and_b32 v{OA}, 1, v16"); Fm(f"v_lshl_add_u32 v{vOW}, v{OA}, 3, v{vOW}"); Fm(f"v_add_u32 v{vOW}, s43, v{vOW}")
    Fm(f"v_and_b32 v{OA}, 3, v0"); Fm(f"v_mul_u32_u24 v{vOR}, {O_ROW}, v{OA}"); Fm(f"v_lshl_add_u32 v{vOR}, v16, 4, v{vOR}")
    Fm(f"v_add_u32 v{vOR}, {L_O}, v{vOR}")
    Fm(f"v_lshl_add_u32 v{vQ}, v16, 2, v{OA}"); Fm(f"v_lshlrev_b32 v{vQ}, 4, v{vQ}"); Fm(f"v_add_u32 v{vQ}, {L_Q}, v{vQ}")
    Fm(f"v_lshrrev_b32 v{OA+1}, 2, v17")
    Fm(f"v_mul_u32_u24 v{OA+2}, 2080, v16"); Fm(f"v_lshl_add_u32 v{OA+2}, v{OA+1}, 8, v{OA+2}")
    Fm(f"v_lshl_add_u32 v{OA+2}, v{OA}, 3, v{OA+2}")
    Fm(f"s_mul_i32 s43, s39, {WO_SLICE}"); Fm(f"v_add_u32 v{OA+2}, s43, v{OA+2}")
    for ch in range(4):
        Fm(f"v_xor_b32 v{OA+3}, {ch}, v{OA+1}"); Fm(f"v_lshl_add_u32 v{TRA+ch}, v{OA+3}, 6, v{OA+2}")
    Fm(f"v_lshl_add_u32 v{vY}, v16, 2, v{OA+1}"); Fm("s_lshl_b32 s43, s39, 3"); Fm(f"v_add_u32 v{vY}, s43, v{vY}")
    Fm(f"v_lshlrev_b32 v{vY}, 13, v{vY}"); Fm(f"v_lshl_add_u32 v{vY}, v{OA}, 4, v{vY}")
    Fm(f"v_lshrrev_b32 v{OA+3}, 5, v0"); Fm(f"v_lshl_add_u32 v{vY}, v{OA+3}, 30, v{vY}")
    Fm("s_lshl2_add_u32 s43, s34, s37"); Fm("s_lshl_b32 s43, s43, 6"); Fm("s_lshl_b32 s41, s36, 18"); Fm("s_add_u32 s43, s43, s41")
    Fm(f"s_add_u32 s43, s43, {WS_Y}")
    Fm("s_add_u32 s68, s30, s43"); Fm("s_addc_u32 s69, s31, 0"); Fm("s_mov_b32 s70, 0"); Fm("s_mov_b32 s71, 0x20000")
    Fm(f"s_lshl2_add_u32 s64, s39, {L_M + 64}")
    Fm(f"s_mov_b32 s65, {f2u(0.08838834764831845):#x}")
    Fm(f"s_mov_b32 s66, {f2u(1.4426950408889634):#x}")
    Fm("s_mov_b32 s67, 0xffff0000"); Fm(f"s_mov_b32 s82, {L_M + 64}")
    for k in range(16): Fm(f"v_mov_b32 v{Q+k}, 0")
    for k in range(4, 16): Fm(f"v_mov_b32 v{S+k}, 0xff800000")
    for k in range(4): Fm(f"v_mov_b32 v{T+k}, 0")
    for k in range(4): Fm(f"v_mov_b32 v{O+k}, 0")

    issued = 0
    def pace():
        nonlocal issued
        if issued > PACE: A(f"s_waitcnt vmcnt({PACE})")
        issued += 1
    did_fill = False
    if fill_first:
        L.extend(fill); did_fill = True
    ndma = 0
    def dma():
        nonlocal ndma
        A("s_mov_b32 m0, s79")
        A(f"s_add_u32 s79, s79, {1024 if ndma % 2 == 0 else 1056}")
        pace()
        A(f"buffer_load_dwordx4 v{vW}, s[60:63], s78 offen nt lds")
        A("s_add_u32 s78, s78, 0x1000")
        ndma += 1
    K0L = 16640
    A(f"s_add_u32 s81, s79, {K0L}")
    A("s_mov_b32 s44, s48"); A("s_mov_b32 s45, s49")
    for i in range(48):
        k = i & 15
        if i < 32:
            st, srd, vo = (X, 52, vK) if i < 16 else (Y, 56, vV)
            pace()
            A(f"buffer_load_dwordx4 v[{st+4*k}:{st+4*k+3}], v{vo}, s[{srd}:{srd+3}], {SOFF[k>>2]} offen offset:{(k&3)*1024} nt")
        else:
            A(f"s_add_u32 m0, s81, {(k>>2)*4096}")
            pace()
            A(f"buffer_load_dwordx4 v{vK}, s[44:47], {SOFF[k>>2]} offen offset:{(k&3)*1024} nt lds")
        if i % 3 == 1: dma()
    assert ndma == 16 and fill_first
    BURST = 8
    stamp(1)
    A("s_barrier")
    stamp(2)
    def extract(u, dst=R):
        d = DK[u & 1]
        A(f"v_mov_b32_dpp v{dst+u}, v{d} quad_perm:[0,0,0,0] row_mask:0xf bank_mask:0xf")
        for r in range(1, 4):
            A(f"v_add_f32_dpp v{dst+u}, v{d+r}, v{dst+u} quad_perm:[{r},{r},{r},{r}] row_mask:0xf bank_mask:0xf")
    def load_q(br):
        A(f"ds_read_b128 v[{OA}:{OA+3}], v{vQ} offset:{br*256}")
        A("s_waitcnt lgkmcnt(0)")
        for j in range(4):
            for k in range(4):
                A(f"v_mov_b32_dpp v{Q+4*j+k}, v{OA+k} quad_perm:[0,1,2,3] row_mask:0xf bank_mask:{1<<j:#x}")
    def nxt(base, tile, voff):
        if base is None:
            A("s_mov_b32 s46, 0")
        else:
            A(f"s_add_u32 s44, s{base}, {tile*65536}"); A(f"s_addc_u32 s45, s{base+1}, 0")
            if voff is not None: A(f"v_mov_b32 v{vN}, v{voff}")
    def call(name): A(f"s_call_b64 s[76:77], {name}")
    def saveR(t):
        for k in range(4): A(f"v_mov_b32 v{S+4*t+k}, v{R+k}")
    def setP(t):
        for k in range(4): A(f"v_mov_b32 v{R+k}, v{S+4*t+k}")
    def burst():
        if BURST: call("L_DMA")
    nxt(48, 1, vK)
    load_q(1)
    call("L_KX"); saveR(0)
    call("L_SM")
    stamp(3)
    load_q(0)
    A(f"v_add_u32 v{OA}, s81, v{vV}")
    A("s_waitcnt vmcnt(16)")
    def klread(k): A(f"ds_read_b128 v[{BT+4*(k%NBT)}:{BT+4*(k%NBT)+3}], v{OA} offset:{k*1024}")
    for k in range(NBT - 1): klread(k)
    for k in range(0 if no_kl else 16):
        u, t = k >> 2, k & 3
        d = DK[u & 1]
        nrd = min(16, k + NBT - 1)
        A(f"s_waitcnt lgkmcnt({nrd - k - 1})")
        c = "0" if t == 0 else f"v[{d}:{d+3}]"
        bt = BT + 4 * (k % NBT)
        A(f"v_mfma_f32_16x16x32_bf16 v[{d}:{d+3}], v[{bt}:{bt+3}], v[{Q+4*t}:{Q+4*t+3}], {c}")
        if k + NBT - 1 < 16: klread(k + NBT - 1)
        if t == 3 and u > 0: extract(u - 1, S + 4)
    burst()
    extract(3, S + 4)
    nxt(48, 2, None); setP(0)
    call("L_VY")
    call("L_OW")
    burst()
    stamp(4)
    nxt(48, 3, None)
    call("L_KX"); saveR(0)
    A("s_waitcnt vmcnt(16)")
    stamp(5)
    A("s_barrier")
    stamp(6)
    call("L_OUT")
    stamp(7)
    A("s_add_u32 s60, s12, s42"); A("s_addc_u32 s61, s13, 0"); A("s_mov_b32 s78, 0"); A(f"s_sub_u32 s79, s81, {K0L}")
    A(f"s_mov_b32 s82, {L_M}")
    A(f"v_add_u32 v{vOW}, {4*O_ROW}, v{vOW}"); A(f"v_add_u32 v{vOR}, {4*O_ROW}, v{vOR}")
    burst()
    nxt(50, 0, vV)
    call("L_KY"); saveR(2)
    burst()
    nxt(50, 1, None)
    call("L_KX"); saveR(3)
    burst()
    A("s_sub_u32 s64, s64, 64")
    call("L_SM")
    stamp(8)
    for k in range(4): A(f"v_mov_b32 v{O+k}, 0")
    nxt(50, 2, None); setP(1); call("L_VY")
    burst()
    nxt(50, 3, None); setP(0); call("L_VX")
    A(f"v_mov_b32 v{OA}, {L_P}"); A(f"ds_write_b32 v{OA}, v{OA}")
    nxt(None, 0, None); setP(2); call("L_VY")
    A("s_mov_b32 s70, 0x40000")
    setP(3); call("L_VX")
    stamp(9)
    call("L_OW")
    A("s_barrier")
    stamp(10)
    call("L_OUT")
    stamp(11)
    stamp_flush()
    A("s_endpgm")

    def reissue(st, k):
        A(f"buffer_load_dwordx4 v[{st+4*k}:{st+4*k+3}], v{vN}, s[44:47], {SOFF[k>>2]} offen offset:{(k&3)*1024} nt")
    def krout(name, st):
        A(f"{name}:")
        for u in range(4):
            d = DK[u & 1]
            for t in range(4):
                k = 4 * u + t
                A("s_waitcnt vmcnt(31)")
                c = "0" if t == 0 else f"v[{d}:{d+3}]"
                A(f"v_mfma_f32_16x16x32_bf16 v[{d}:{d+3}], v[{st+4*k}:{st+4*k+3}], v[{Q+4*t}:{Q+4*t+3}], {c}")
                reissue(st, k)
                if t == 2 and u > 0: extract(u - 1)
        A("s_nop 7")
        extract(3)
        A("s_setpc_b64 s[76:77]")
    def vrout(name, st):
        A(f"{name}:")
        A("s_nop 0")
        for k in range(16):
            u, t = k >> 2, k & 3
            a = AOP[k & 1]
            for j in range(4):
                A(f"v_and_b32_dpp v{a+j}, v{R+u}, v{MASK+j} row_newbcast:{4*t} row_mask:0xf bank_mask:0xf")
            if k > 0: reissue(st, k - 1)
            else: A("s_nop 0")
            A("s_waitcnt vmcnt(31)")
            A(f"v_mfma_f32_16x16x32_bf16 v[{O}:{O+3}], v[{a}:{a+3}], v[{st+4*k}:{st+4*k+3}], v[{O}:{O+3}]")
        reissue(st, 15)
        A("s_setpc_b64 s[76:77]")
    vrout("L_VX", X)
    A("L_OW:")
    A("s_nop 5")
    A(f"v_cvt_pk_bf16_f32 v{OA}, v{O}, v{O+1}"); A(f"v_cvt_pk_bf16_f32 v{OA+1}, v{O+2}, v{O+3}")
    A(f"ds_write_b64 v{vOW}, v[{OA}:{OA+1}]")
    A("s_waitcnt lgkmcnt(0)")
    A("s_setpc_b64 s[76:77]")
    A("L_OUT:")
    if no_out: A("s_setpc_b64 s[76:77]")
    for kb in range(4):
        A(f"ds_read_b128 v[{OA+4*kb}:{OA+4*kb+3}], v{vOR} offset:{kb*64}")
    A(f"v_mov_b32 v{DK[0]}, s82")
    A(f"ds_read_b128 v[{F}:{F+3}], v{DK[0]}")
    A(f"ds_read_b64 v[{AOP[0]}:{AOP[0]+1}], v{DK[0]} offset:32")
    steps = [(cg, kb) for cg in range(8) for kb in range(4)]
    def trread(n):
        cg, kb = steps[n]
        bt = BT + 4 * (n % NBT)
        for rd in range(2):
            A(f"ds_read_b64_tr_b16 v[{bt+2*rd}:{bt+2*rd+1}], v{TRA + (cg>>1)} offset:{kb*8320 + rd*1024 + (cg&1)*32}")
    PRE = 4
    for n in range(PRE): trread(n)
    nread = PRE
    def fin(cg):
        d = DK[cg & 1]
        for r in range(4):
            A(f"v_fmac_f32_dpp v{T+(cg&3)}, v{d+r}, v{F+r} quad_perm:[0,1,2,3] row_mask:{1<<(cg>>2):#x} bank_mask:0xf")
    for n, (cg, kb) in enumerate(steps):
        d = DK[cg & 1]
        bt = BT + 4 * (n % NBT)
        A(f"s_waitcnt lgkmcnt({2*(nread - n - 1)})")
        c = "0" if kb == 0 else f"v[{d}:{d+3}]"
        A(f"v_mfma_f32_16x16x32_bf16 v[{d}:{d+3}], v[{OA+4*kb}:{OA+4*kb+3}], v[{bt}:{bt+3}], {c}")
        while nread < len(steps) and nread - n - 1 < NBT - 1 and 2 * (nread - n) <= 14:
            trread(nread); nread += 1
        G = AOP[0]
        if n == 0:
            A(f"v_max3_f32 v{G+2}, v{F}, v{F+1}, v{F+2}"); A(f"v_max_f32 v{G+2}, v{G+2}, v{F+3}")
            for r in range(4): A(f"v_sub_f32 v{F+r}, v{F+r}, v{G+2}")
        if n == 1:
            for r in range(4): A(f"v_exp_f32 v{F+r}, v{F+r}")
        if n == 2:
            for r in range(4): A(f"v_mul_f32 v{T+r}, v{T+r}, v{G+1}")
        if n == 3:
            for r in range(4): A(f"v_mul_f32 v{F+r}, v{F+r}, v{G}")
        if kb == 3 and cg > 0:
            if n > 24: A("s_nop 1")
            fin(cg - 1)
    A("s_nop 3")
    fin(7)
    for k in range(4): A(f"v_min_u32 v{OA+k}, -2, v{T+k}")
    A(f"buffer_store_dwordx4 v[{OA}:{OA+3}], v{vY}, s[68:71], 0 offen sc1")
    A("s_nop 0")
    A("s_setpc_b64 s[76:77]")
    vrout("L_VY", Y)
    krout("L_KX", X)
    krout("L_KY", Y)
    if BURST:
        A("L_DMA:")
        for n in range(BURST):
            A("s_mov_b32 m0, s79")
            A(f"s_add_u32 s79, s79, {1024 if n % 2 == 0 else 1056}")
            A(f"buffer_load_dwordx4 v{vW}, s[60:63], s78 offen nt lds")
            A("s_add_u32 s78, s78, 0x1000")
        A("s_setpc_b64 s[76:77]")
    A("L_SM:")
    if no_sm: A("s_setpc_b64 s[76:77]")
    t0 = OA
    for rnd in range(2):
        for k in range(0, 16, 2):
            A(f"v_cvt_pk_bf16_f32 v{t0+k//2}, v{S+k}, v{S+k+1}")
        for k in range(0, 16, 2):
            A(f"v_lshlrev_b32 v{S+k}, 16, v{t0+k//2}"); A(f"v_and_b32 v{S+k+1}, s67, v{t0+k//2}")
        if rnd == 0:
            for k in range(16): A(f"v_mul_f32 v{S+k}, s65, v{S+k}")
    A(f"v_max3_f32 v{t0}, v{S}, v{S+1}, v{S+2}")
    for k in range(3, 15, 2): A(f"v_max3_f32 v{t0}, v{t0}, v{S+k}, v{S+k+1}")
    A(f"v_max_f32 v{t0}, v{t0}, v{S+15}")
    def wred(op, r):
        for ctl in ("row_ror:4 row_mask:0xf", "row_ror:8 row_mask:0xf", "row_bcast:15 row_mask:0xa", "row_bcast:31 row_mask:0xc"):
            A("s_nop 1"); A(f"{op}_dpp v{r}, v{r}, v{r} {ctl} bank_mask:0xf")
    wred("v_max_f32", t0)
    A("s_nop 1"); A(f"v_readlane_b32 s80, v{t0}, 63")
    A(f"v_mov_b32 v{t0+2}, s66"); A("s_nop 1")
    A(f"v_mul_f32 v{t0+2}, s80, v{t0+2}")
    for k in range(16): A(f"v_fma_f32 v{S+k}, v{S+k}, s66, -v{t0+2}")
    for k in range(16): A(f"v_exp_f32 v{S+k}, v{S+k}")
    A(f"v_add_f32 v{t0+3}, v{S}, v{S+1}")
    for k in range(2, 16): A(f"v_add_f32 v{t0+3}, v{t0+3}, v{S+k}")
    for k in range(16): A(f"v_cvt_pk_bf16_f32 v{S+k}, v{S+k}, v{S+k}")
    wred("v_add_f32", t0 + 3)
    A(f"v_mov_b32 v{t0}, s64")
    A("s_mov_b32 exec_lo, 0"); A("s_mov_b32 exec_hi, 0x80000000")
    A(f"ds_write2_b32 v{t0}, v{t0+2}, v{t0+3} offset1:4")
    A("s_mov_b64 exec, -1")
    A("s_setpc_b64 s[76:77]")

    A('.section .rodata,"a"'); A(".p2align 6"); A(f".amdhsa_kernel {KN}")
    A("  .amdhsa_next_free_vgpr 256"); A("  .amdhsa_next_free_sgpr 100"); A("  .amdhsa_accum_offset 256")
    A("  .amdhsa_group_segment_fixed_size 0"); A("  .amdhsa_kernarg_size 112"); A("  .amdhsa_user_sgpr_count 2")
    A("  .amdhsa_user_sgpr_kernarg_segment_ptr 1"); A("  .amdhsa_system_sgpr_workgroup_id_x 1")
    A("  .amdhsa_float_denorm_mode_32 3")
    A(".end_amdhsa_kernel")
    open(path, "w").write("\n".join(L) + "\n")

if __name__ == "__main__":
    gen(sys.argv[1], stamps=(len(sys.argv) > 2 and sys.argv[2] == "st"))
```

```python
import sys, struct
KN = "gated_mix__gqa_block_cached__sliding_block_cached__decode_kernel"
def f2u(x): return struct.unpack("<I", struct.pack("<f", x))[0]

WS_QP = 0x0
WS_ML = 0x80000
WS_E  = 0x98000
WS_Y  = 0x100000
WS_ST = 0x200000
TB = 10
WO_SLICE = 33280
L_O = 4 * WO_SLICE
O_ROW = 576
L_Q = L_O + 8 * O_ROW
L_M = L_Q + 512
L_P = L_M + 128
L_T = L_P + 16
LDS_BYTES = L_T + 32

HEAD = """; gated mix of two cached-attention decode blocks, one fused launch (generated by the author's own script).
;   wave 0     : 1/8 of the head's q projection (shared through d_ws), gate, softmax statistics exchange
;   waves 1..4 : stream K then V (nt loads), scores/softmax/PV on MFMA, output projection from LDS,
"""

def gen(path, stamps=False, PACE=9, spin=40000, comm_off=0, WSB=0, ROT=13, DEFER=6, WSPLIT=(9, 19, 28), cpf=True,
        qretry=4, lsleep=8, mlsleep=10, BAR0=None, qsleep=0, gate_first=True, CMAP=0):
    L = []
    A = L.append
    def stamp(k):
        if stamps:
            A("s_memrealtime s[96:97]"); A("s_waitcnt lgkmcnt(0)"); A(f"v_writelane_b32 v19, s96, {k}")
    def stamp_flush():
        if stamps:
            A("s_lshl_b32 s96, s2, 3"); A("s_add_u32 s96, s96, s38"); A("s_lshl_b32 s96, s96, 8"); A(f"s_add_u32 s96, s96, {WS_ST}")
            A("s_getreg_b32 s97, hwreg(HW_REG_XCC_ID)"); A("v_writelane_b32 v19, s97, 63")
            A("v_lshlrev_b32 v18, 2, v0"); A("v_add_u32 v18, s96, v18")
            A("global_store_dword v18, v19, s[30:31]")
    def C(t): A("; " + t)

    L.extend(HEAD.rstrip().split("\n"))
    A(f"; @launch grid=(256,1,1) block=(320,1,1) lds={LDS_BYTES}")
    A('.amdgcn_target "amdgcn-amd-amdhsa--gfx950"')
    A(".text"); A(f".globl {KN}"); A(".p2align 8"); A(f".type {KN},@function"); A(f"{KN}:")
    A("s_cmp_ge_u32 s2, 256"); A("s_cbranch_scc1 L_end")
    A("s_load_dwordx16 s[4:19], s[0:1], 0")
    A("s_load_dwordx8 s[20:27], s[0:1], 64")
    A("s_load_dwordx4 s[28:31], s[0:1], 96")
    A("v_lshrrev_b32 v1, 6, v0")
    A("s_and_b32 s32, s2, 7"); A("s_lshr_b32 s33, s2, 3")
    A("v_readfirstlane_b32 s38, v1")
    A("v_and_b32 v0, 63, v0")
    A("s_lshr_b32 s34, s33, 3"); A("s_lshl2_add_u32 s34, s32, s34          ; h")
    A("s_and_b32 s35, s33, 7")
    A("s_lshr_b32 s36, s35, 2                  ; b")
    A("s_and_b32 s37, s35, 3                   ; s")
    A("v_lshrrev_b32 v16, 4, v0")
    A("v_and_b32 v17, 15, v0")
    if stamps: A("v_mov_b32 v19, 0")
    A("s_cmp_lg_u32 s38, 0"); A("s_cbranch_scc1 L_comp")

    C("================ wave 0 ================")
    if cpf:
        C("pull one KiB of this kernel's code towards the L2 so that later instruction fetches hit there")
        A("s_getpc_b64 s[40:41]"); A("L_pf:")
        A("s_lshl_b32 s42, s33, 10"); A("s_min_u32 s42, s42, L_codeend-L_pf-1024"); A("s_and_b32 s42, s42, -16"); A("s_and_b32 s40, s40, -16")
        A("v_lshl_add_u32 v1, v0, 4, s42")
        A("global_load_dwordx4 v[48:51], v1, s[40:41]")
    A("s_setprio 3")
    WQ, AOPS, XV, SEL, DQ = 128, 64, 20, 36, 52
    C("rows [128*rb, 128*rb+128) of wq_br (br = jj&1, rb = jj>>1), this head's 128 columns, both batches")
    A("s_and_b32 s53, s35, 1"); A("s_lshr_b32 s43, s35, 1")
    A("v_lshlrev_b32 v1, 18, v16"); A("v_lshl_add_u32 v1, v17, 4, v1")
    A("v_lshrrev_b32 v2, 3, v17"); A("v_lshlrev_b32 v2, 10, v2"); A("v_lshl_add_u32 v2, v16, 6, v2")
    A("s_lshl_b32 s40, s43, 8"); A("v_add_u32 v2, s40, v2")
    A("s_lshl_b32 s40, s43, 20"); A("s_lshl_b32 s41, s34, 8"); A("s_add_u32 s40, s40, s41")
    A("s_mov_b32 s46, 0x100000"); A("s_mov_b32 s47, 0x20000")
    A("s_mov_b32 s72, 0"); A("s_movk_i32 s73, 0x2000")
    A("s_cmp_eq_u32 s53, 0")
    A("s_waitcnt lgkmcnt(0)")
    A("s_cselect_b32 s44, s10, s20"); A("s_cselect_b32 s45, s11, s21")
    if WSB: A(f"s_add_u32 s30, s30, {WSB}"); A("s_addc_u32 s31, s31, 0")
    stamp(0)
    for k in range(4): A(f"global_load_dwordx4 v[{XV+4*k}:{XV+4*k+3}], v2, s[4:5] offset:{16*k}")
    A("s_add_u32 s44, s44, s40"); A("s_addc_u32 s45, s45, 0")
    A(f"s_load_dwordx2 s[92:93], s[30:31], {WS_E}")
    for t in range(32):
        A(f"buffer_load_dwordx4 v[{WQ+4*t}:{WQ+4*t+3}], v1, s[44:47], s72 offen nt")
        if t < 31: A("s_add_u32 s72, s72, s73")
        if BAR0 is not None and t == BAR0: A("s_barrier")
    A("v_lshlrev_b32 v60, 4, v0")
    C("byte selectors that place x on the diagonal of the A operand")
    A("v_and_b32 v8, 1, v17"); A("v_lshlrev_b32 v8, 4, v8")
    A("v_bfe_u32 v9, v17, 1, 2")
    A("v_mov_b32 v15, 0x0c0c0c0c")
    for hs in range(2):
        src = 0x0100 if hs == 0 else 0x0302
        A(f"v_mov_b32 v10, {src ^ 0x0c0c:#x}"); A("v_lshlrev_b32 v10, v8, v10"); A("v_xor_b32 v10, v10, v15")
        for j in range(4):
            A(f"v_cmp_eq_u32 vcc, {j}, v9"); A("s_nop 1"); A(f"v_cndmask_b32 v{SEL+4*hs+j}, v15, v10, vcc")
    A("s_lshl_b32 s40, s34, 13"); A("s_lshl_b32 s41, s53, 12"); A("s_add_u32 s41, s40, s41"); A("s_lshl_b32 s42, s43, 10"); A("s_add_u32 s41, s41, s42")
    A("v_add_u32 v62, s41, v60")
    A("s_lshl_b32 s42, s36, 9"); A("s_add_u32 s40, s40, s42")
    A("v_lshrrev_b32 v5, 5, v0"); A("v_lshlrev_b32 v3, 12, v5"); A("v_and_b32 v4, 31, v0"); A("v_lshl_add_u32 v3, v4, 4, v3")
    A("v_add_u32 v3, s40, v3")
    A("v_lshlrev_b32 v5, 8, v5"); A("v_lshl_add_u32 v5, v17, 4, v5"); A("v_and_b32 v6, 1, v16"); A("v_lshl_add_u32 v5, v6, 3, v5")
    A(f"v_add_u32 v5, {L_Q}, v5")
    C("tag of this launch (differs from the epoch word, hence from every word an earlier launch tagged)")
    A("s_waitcnt lgkmcnt(0)")
    A("s_mul_i32 s92, s92, 0x9e3779b1"); A("s_add_u32 s92, s92, 0x7f4a7c15")
    A("s_mul_i32 s93, s93, 0x85ebca6d"); A("s_add_u32 s93, s93, 0x2545f491")
    A(f"s_bfe_u32 s84, s92, {(TB << 16) | 0:#x}"); A(f"s_bfe_u32 s85, s92, {(TB << 16) | 16:#x}")
    A(f"s_bfe_u32 s86, s93, {(TB << 16) | 0:#x}"); A(f"s_bfe_u32 s87, s93, {(TB << 16) | 16:#x}")
    A("v_mov_b32 v8, s92"); A("v_mov_b32 v9, s93"); A("v_and_b32 v10, 2, v0"); A("v_cmp_eq_u32 vcc, 0, v10"); A("v_and_b32 v10, 1, v0")
    A("s_and_b32 s41, s92, 1")
    A("v_cndmask_b32 v8, v9, v8, vcc"); A("v_lshlrev_b32 v10, 4, v10"); A("v_lshrrev_b32 v8, v10, v8")
    for k in range(4):
        A(f"v_bfe_u32 v{12+k}, v8, {4*k+1}, 3"); A(f"v_lshl_or_b32 v{12+k}, v{12+k}, 1, s41")
    A("v_lshlrev_b32 v6, 2, v0"); A(f"v_add_u32 v6, {L_M}, v6"); A("v_mov_b32 v7, 0")
    for k in range(4): A(f"v_writelane_b32 v7, s{84+k}, {36+k}")
    A("v_writelane_b32 v7, s92, 40"); A("v_writelane_b32 v7, s93, 41")
    A("s_mov_b32 exec_hi, 0x3ff")
    A("ds_write_b32 v6, v7")
    A("s_mov_b64 exec, -1")
    A("s_waitcnt vmcnt(32)")
    def perms(t):
        for j in range(4):
            A(f"v_perm_b32 v{AOPS+4*(t&15)+j}, v{XV+(t>>1)}, v{XV+(t>>1)}, v{SEL+4*(t&1)+j}")
    for t in range(16): perms(t)
    for t in range(32):
        A(f"s_waitcnt vmcnt({31 - t})")
        c = "0" if t == 0 else f"v[{DQ}:{DQ+3}]"
        A(f"v_mfma_f32_16x16x32_bf16 v[{DQ}:{DQ+3}], v[{AOPS+4*(t&15)}:{AOPS+4*(t&15)+3}], v[{WQ+4*t}:{WQ+4*t+3}], {c}")
        if t < 16: perms(t + 16)
    A("s_lshl_b32 s41, s36, 10"); A("v_add_u32 v7, s41, v60")
    A("s_nop 5")
    for k in range(4): A(f"v_bfi_b32 v{8+k}, 15, v{12+k}, v{DQ+k}")
    A("global_store_dwordx4 v62, v[8:11], s[30:31] sc1")
    stamp(1)
    A("global_load_dwordx4 v[44:47], v7, s[4:5]"); A("global_load_dwordx4 v[48:51], v60, s[24:25]")
    def gate_and_setup():
        C("gate g = sigmoid(sum(x*gate_w)) with the reference's bf16 roundings")
        A("s_mov_b32 s67, 0xffff0000")
        for k in range(4):
            A(f"v_lshlrev_b32 v52, 16, v{44+k}"); A(f"v_and_b32 v53, s67, v{44+k}")
            A(f"v_lshlrev_b32 v54, 16, v{48+k}"); A(f"v_and_b32 v55, s67, v{48+k}")
            A("v_mul_f32 v52, v52, v54"); A("v_mul_f32 v53, v53, v55")
            A("v_cvt_pk_bf16_f32 v52, v52, v53")
            A("v_lshlrev_b32 v53, 16, v52"); A("v_and_b32 v52, s67, v52")
            if k == 0: A("v_add_f32 v56, v52, v53")
            else: A("v_add_f32 v56, v56, v52"); A("v_add_f32 v56, v56, v53")
        for ctl in ("row_ror:1 row_mask:0xf", "row_ror:2 row_mask:0xf", "row_ror:4 row_mask:0xf", "row_ror:8 row_mask:0xf", "row_bcast:15 row_mask:0xa", "row_bcast:31 row_mask:0xc"):
            A("s_nop 1"); A(f"v_add_f32_dpp v56, v56, v56 {ctl} bank_mask:0xf")
        A("v_cvt_pk_bf16_f32 v56, v56, v56"); A("v_and_b32 v56, s67, v56")
        A(f"v_mul_f32 v56, {f2u(-1.4426950408889634):#x}, v56"); A("v_exp_f32 v56, v56"); A("s_nop 0")
        A("v_add_f32 v56, 1.0, v56"); A("v_rcp_f32 v56, v56"); A("s_nop 0")
        A("v_cvt_pk_bf16_f32 v56, v56, v56"); A("v_and_b32 v56, s67, v56")
        A("v_sub_f32 v57, 1.0, v56"); A("v_cvt_pk_bf16_f32 v57, v57, v57"); A("v_and_b32 v57, s67, v57")
        A("s_nop 1"); A("v_readlane_b32 s54, v56, 63"); A("v_readlane_b32 s55, v57, 63")
        C("statistics lines of this (b,h): lane = 4*br + s'")
        A("s_lshl_b32 s52, s36, 5"); A("s_add_u32 s52, s52, s34"); A("s_lshl_b32 s52, s52, 9"); A(f"s_add_u32 s52, s52, {WS_ML}")
        A("v_and_b32 v27, 3, v0"); A("v_lshlrev_b32 v26, 7, v27"); A("v_bfe_u32 v25, v0, 2, 1"); A("v_lshl_add_u32 v26, v25, 4, v26"); A("v_add_u32 v26, s52, v26")
        A("v_lshlrev_b32 v27, 2, v27"); A("v_lshl_add_u32 v27, v25, 6, v27"); A(f"v_add_u32 v27, {L_M}, v27")
        A(f"v_mov_b32 v28, {L_M}"); A("v_lshl_add_u32 v29, v25, 2, v28")
        A("v_mov_b32 v30, s54"); A("v_mov_b32 v31, s55"); A("v_cmp_eq_u32 vcc, 1, v25"); A("s_nop 1"); A("v_cndmask_b32 v30, v30, v31, vcc")
        A("s_lshl_b32 s58, 0x11, s37"); A("s_mov_b32 s59, 0")
        A("v_mov_b32 v33, s92"); A("v_mov_b32 v35, s93")
    A("s_waitcnt vmcnt(0)")
    stamp(2)
    if gate_first: gate_and_setup()
    if qsleep: A(f"s_sleep {qsleep}")
    A(f"s_mov_b32 s90, {spin}")
    C("the four partial q rows of both branches: accepted when every word carries the tag in the same pass")
    A("L_qd:")
    for p in range(4): A(f"global_load_dwordx4 v[{64+4*p}:{64+4*p+3}], v3, s[30:31] offset:{p*1024} sc1")
    A("s_waitcnt vmcnt(0)")
    for p in range(4):
        for k in range(4): A(f"v_xor_b32 v{64+4*p+k}, v{12+k}, v{64+4*p+k}")
    A("v_or3_b32 v8, v64, v65, v66")
    for k in range(67, 79, 2): A(f"v_or3_b32 v8, v8, v{k}, v{k+1}")
    A("v_or_b32 v8, v8, v79"); A("v_and_b32 v8, 15, v8")
    A("v_cmp_ne_u32 vcc, 0, v8"); A("s_nop 1")
    A("s_cmp_eq_u64 vcc, 0"); A("s_cbranch_scc1 L_qd_ok")
    A(f"s_sleep {qretry}")
    A("s_sub_u32 s90, s90, 1"); A("s_cbranch_scc0 L_qd")
    A("L_qd_ok:")
    if stamps: A("v_writelane_b32 v19, s90, 20")
    for k in range(0, 4, 2):
        A(f"v_pk_add_f32 v[{64+k}:{65+k}], v[{64+k}:{65+k}], v[{68+k}:{69+k}]"); A(f"v_pk_add_f32 v[{72+k}:{73+k}], v[{72+k}:{73+k}], v[{76+k}:{77+k}]")
    for k in range(0, 4, 2):
        A(f"v_pk_add_f32 v[{8+k}:{9+k}], v[{64+k}:{65+k}], v[{72+k}:{73+k}]")
    A("v_cvt_pk_bf16_f32 v8, v8, v9"); A("v_cvt_pk_bf16_f32 v9, v10, v11")
    A("ds_write_b64 v5, v[8:9]")
    A("s_waitcnt lgkmcnt(0)")
    stamp(4)
    A("s_barrier")
    A("s_setprio 0")
    if comm_off == 3:
        A("s_barrier"); A("s_barrier"); stamp(10); stamp_flush(); A("s_endpgm")
    if not gate_first: gate_and_setup()
    stamp(5)
    A("s_barrier                               ; 2")
    stamp(6)
    def qcomb():
        A("v_mov_b32 v32, v8")
        for qp in ("[1,0,3,2]", "[2,3,0,1]"):
            A("s_nop 1"); A(f"v_max_f32_dpp v32, v32, v32 quad_perm:{qp} row_mask:0xf bank_mask:0xf")
        A("v_sub_f32 v8, v8, v32"); A("v_exp_f32 v8, v8"); A("s_nop 0")
        A("v_mul_f32 v34, v10, v8")
        for qp in ("[1,0,3,2]", "[2,3,0,1]"):
            A("s_nop 1"); A(f"v_add_f32_dpp v34, v34, v34 quad_perm:{qp} row_mask:0xf bank_mask:0xf")
    C("wait for the four waves' (max,sum) of both branches, publish this workgroup's")
    A(f"s_mov_b32 s90, {spin*20}")
    A("L_wl:")
    A(f"s_sleep {lsleep}")
    A("ds_read_b32 v10, v27 offset:16")
    A("s_waitcnt lgkmcnt(0)")
    A("v_cmp_eq_u32 vcc, 0, v10"); A("s_nop 1")
    A("s_cmp_eq_u64 vcc, 0"); A("s_cbranch_scc1 L_wl_ok")
    A("s_sub_u32 s90, s90, 1"); A("s_cbranch_scc0 L_wl")
    A("L_wl_ok:")
    A("ds_read_b32 v8, v27")
    A("s_waitcnt lgkmcnt(0)")
    qcomb()
    A("s_mov_b64 exec, s[58:59]")
    A("global_store_dwordx4 v26, v[32:35], s[30:31] sc1")
    A("s_mov_b64 exec, -1")
    stamp(7)
    C("once the stream has moved on, collect the four splits' statistics")
    A(f"s_mov_b32 s90, {spin*20}")
    A("L_wp:")
    A(f"s_sleep {lsleep}")
    A("ds_read_b32 v9, v28 offset:128")
    A("s_waitcnt lgkmcnt(0)")
    A("v_readfirstlane_b32 s41, v9"); A("s_nop 1")
    A("s_cmp_lg_u32 s41, 0"); A("s_cbranch_scc1 L_wp_ok")
    A("s_sub_u32 s90, s90, 1"); A("s_cbranch_scc0 L_wp")
    A("L_wp_ok:")
    A(f"s_mov_b32 s90, {spin}")
    A("s_mov_b64 exec, 0xff")
    A("L_ml:")
    A("global_load_dwordx4 v[8:11], v26, s[30:31] sc1")
    A("s_waitcnt vmcnt(0)")
    A("v_xor_b32 v9, s92, v9"); A("v_xor_b32 v11, s93, v11"); A("v_or_b32 v9, v9, v11")
    A("v_cmp_ne_u32 vcc, 0, v9"); A("s_nop 1")
    A("s_cmp_eq_u64 vcc, 0"); A("s_cbranch_scc1 L_ml_ok")
    A(f"s_sleep {mlsleep}")
    A("s_sub_u32 s90, s90, 1"); A("s_cbranch_scc0 L_ml")
    A("L_ml_ok:")
    qcomb()
    A("v_rcp_f32 v34, v34"); A("v_mul_f32 v8, v30, v8"); A("v_mul_f32 v8, v8, v34")
    A("s_mov_b64 exec, s[58:59]")
    A("ds_write_b32 v29, v8 offset:32")
    A("s_mov_b64 exec, -1")
    A("s_waitcnt lgkmcnt(0)")
    stamp(9)
    A("s_barrier                               ; 3")
    stamp(10)
    stamp_flush()
    A("L_end:")
    A("s_endpgm")

    vK, vV, vN, vW = 1, 2, 3, 4
    MASK = 5
    vOW, vOR = 9, 10
    TRA = 11
    vY = 15
    Q, S = 20, 36
    vM, vQ, vG, vO = 52, 53, 54, 55
    AOP = [56, 60]
    DK = [64, 68]
    O, T, F, OA = 72, 76, 80, 84
    BT, NBT = 100, 7
    X, Y = 128, 192
    C("================ waves 1..4 ================")
    A("L_comp:")
    pre = []; post = []
    P_ = pre.append; Fm = post.append
    P_("s_sub_u32 s39, s38, 1")
    P_("s_lshl_b32 s75, s36, 5"); P_("s_add_u32 s75, s75, s34"); P_("s_lshl_b32 s40, s75, 20")
    P_(f"s_mul_i32 s75, s75, {ROT}"); P_("s_add_u32 s75, s75, s39"); P_("s_lshl_b32 s75, s75, 10")
    P_("s_lshl_b32 s41, s37, 16"); P_("s_add_u32 s41, s41, s40"); P_(f"s_add_u32 s41, s41, {3072*256}")
    P_(f"v_lshrrev_b32 v{vK}, 2, v17"); P_(f"v_lshlrev_b32 v{vK}, 8, v{vK}"); P_(f"v_lshl_add_u32 v{vK}, v16, 6, v{vK}")
    P_(f"v_and_b32 v{vN}, 3, v0"); P_(f"v_lshl_add_u32 v{vK}, v{vN}, 4, v{vK}")
    P_(f"v_lshlrev_b32 v{vV}, 4, v0")
    P_(f"v_lshlrev_b32 v{vW}, 4, v17"); P_(f"v_lshlrev_b32 v{OA}, 6, v16"); P_(f"v_xor_b32 v{vW}, v{vW}, v{OA}"); P_(f"v_lshl_add_u32 v{vW}, v16, 10, v{vW}")
    P_("s_movk_i32 s72, 0x1000"); P_("s_mov_b32 s73, 0x3ffff"); P_("s_mov_b32 s83, 0xffff")
    P_("s_and_b32 s74, s75, s83"); P_("s_and_b32 s75, s75, s73")
    P_("s_mov_b32 s54, 0x10000"); P_("s_mov_b32 s55, 0x20000"); P_("s_mov_b32 s58, 0x10000"); P_("s_mov_b32 s59, 0x20000")
    P_("s_mov_b32 s62, 0x20000"); P_("s_mov_b32 s63, 0x20000")
    P_("s_lshl_b32 s42, s34, 17"); P_("s_lshl_b32 s43, s39, 8"); P_("s_add_u32 s42, s42, s43")
    P_(f"s_mul_i32 s79, s39, {WO_SLICE}")
    P_("s_lshl_b32 s80, s37, 18"); P_("s_add_u32 s80, s80, s40")
    srds = ["s_add_u32 s52, s16, s41", "s_addc_u32 s53, s17, 0", "s_add_u32 s56, s18, s41", "s_addc_u32 s57, s19, 0",
            "s_add_u32 s60, s22, s42", "s_addc_u32 s61, s23, 0",
            "s_add_u32 s44, s6, s80", "s_addc_u32 s45, s7, 0", "s_add_u32 s48, s8, s80", "s_addc_u32 s49, s9, 0",
            "s_add_u32 s84, s12, s42", "s_addc_u32 s85, s13, 0", "s_add_u32 s68, s30, s81", "s_addc_u32 s69, s31, 0",
            "s_mov_b32 s92, s26", "s_mov_b32 s93, s27"]
    Fm("s_mov_b32 s46, 0x40000"); Fm("s_mov_b32 s47, 0x20000"); Fm("s_mov_b32 s50, 0x40000"); Fm("s_mov_b32 s51, 0x20000")
    Fm("s_mov_b32 s86, 0x20000"); Fm("s_mov_b32 s87, 0x20000")
    Fm(f"v_and_b32 v{OA}, 1, v17"); Fm(f"v_lshlrev_b32 v{OA}, 4, v{OA}"); Fm(f"v_mov_b32 v{OA+1}, 0xffff")
    Fm(f"v_lshlrev_b32 v{OA}, v{OA}, v{OA+1}"); Fm(f"v_lshrrev_b32 v{OA+1}, 1, v17")
    for j in range(4):
        Fm(f"v_cmp_eq_u32 vcc, {j}, v{OA+1}"); Fm("s_nop 1"); Fm(f"v_cndmask_b32 v{MASK+j}, 0, v{OA}, vcc")
    Fm(f"s_mul_i32 s43, s39, {O_ROW}"); Fm(f"s_add_u32 s43, s43, {L_O}")
    Fm(f"v_lshrrev_b32 v{vOW}, 1, v16"); Fm(f"v_lshlrev_b32 v{vOW}, 8, v{vOW}"); Fm(f"v_lshl_add_u32 v{vOW}, v17, 4, v{vOW}")
    Fm(f"v_and_b32 v{OA}, 1, v16"); Fm(f"v_lshl_add_u32 v{vOW}, v{OA}, 3, v{vOW}"); Fm(f"v_add_u32 v{vOW}, s43, v{vOW}")
    Fm(f"v_mul_u32_u24 v{vOR}, {O_ROW}, v{vN}"); Fm(f"v_lshl_add_u32 v{vOR}, v16, 4, v{vOR}"); Fm(f"v_add_u32 v{vOR}, {L_O}, v{vOR}")
    Fm(f"v_lshl_add_u32 v{vQ}, v16, 2, v{vN}"); Fm(f"v_lshlrev_b32 v{vQ}, 4, v{vQ}"); Fm(f"v_add_u32 v{vQ}, {L_Q}, v{vQ}")
    Fm(f"v_lshrrev_b32 v{OA+1}, 2, v17")
    Fm(f"v_mul_u32_u24 v{OA+2}, 2080, v16"); Fm(f"v_lshl_add_u32 v{OA+2}, v{OA+1}, 8, v{OA+2}"); Fm(f"v_lshl_add_u32 v{OA+2}, v{vN}, 3, v{OA+2}")
    Fm(f"v_add_u32 v{OA+2}, s79, v{OA+2}")
    for ch in range(4):
        Fm(f"v_xor_b32 v{OA+3}, {ch}, v{OA+1}"); Fm(f"v_lshl_add_u32 v{TRA+ch}, v{OA+3}, 6, v{OA+2}")
    Fm("s_lshl_b32 s43, s39, 9"); Fm(f"v_add_u32 v{vY}, s43, v{vV}")
    Fm(f"v_lshrrev_b32 v{OA+3}, 5, v0"); Fm(f"v_lshl_add_u32 v{vY}, v{OA+3}, 30, v{vY}")
    P_("s_lshl2_add_u32 s81, s34, s37"); P_("s_lshl_b32 s81, s81, 11"); P_("s_lshl_b32 s43, s36, 18"); P_("s_add_u32 s81, s81, s43"); P_(f"s_add_u32 s81, s81, {WS_Y}")
    Fm("s_movk_i32 s70, 0x800"); Fm("s_mov_b32 s71, 0x20000")
    Fm(f"s_movk_i32 s82, {(1<<TB)-1:#x}")
    if CMAP == 0:
        Fm("s_lshr_b32 s88, s32, 1"); Fm("s_lshl_b32 s88, s88, 4"); Fm("s_lshr_b32 s43, s33, 1"); Fm("s_add_u32 s88, s88, s43")
        Fm("s_or_b32 s89, s32, s33"); Fm("s_and_b32 s89, s89, 1")
    elif CMAP == 1:
        Fm("s_lshl_b32 s88, s32, 3"); Fm("s_lshr_b32 s43, s33, 2"); Fm("s_add_u32 s88, s88, s43"); Fm("s_and_b32 s89, s33, 3")
    elif CMAP == 2:
        Fm("s_lshr_b32 s88, s32, 2"); Fm("s_lshl_b32 s88, s88, 5"); Fm("s_add_u32 s88, s88, s33"); Fm("s_and_b32 s89, s32, 3")
    Fm("s_lshl2_add_u32 s88, s88, s39")
    Fm("s_lshr_b32 s78, s88, 7"); Fm("s_lshl_b32 s78, s78, 18"); Fm("s_and_b32 s43, s88, 127"); Fm("s_lshl4_add_u32 s78, s43, s78"); Fm(f"s_add_u32 s78, s78, {WS_Y}")
    Fm(f"v_lshlrev_b32 v{vG}, 11, v0"); Fm(f"v_add_u32 v{vG}, s78, v{vG}")
    Fm("s_lshr_b32 s78, s88, 4"); Fm("s_lshl_b32 s78, s78, 7"); Fm("s_and_b32 s43, s88, 15"); Fm("s_lshl1_add_u32 s78, s43, s78")
    Fm(f"v_lshlrev_b32 v{vO}, 5, v16"); Fm(f"v_lshl_add_u32 v{vO}, v17, 20, v{vO}"); Fm(f"v_add_u32 v{vO}, s78, v{vO}")
    Fm("s_movk_i32 s94, 0x800"); Fm("s_mov_b32 s95, 0x20000"); Fm(f"s_mov_b32 s90, {spin}")
    Fm(f"s_lshl2_add_u32 s64, s39, {L_M}")
    Fm(f"s_mov_b32 s65, {f2u(0.08838834764831845):#x}"); Fm(f"s_mov_b32 s66, {f2u(1.4426950408889634):#x}")
    Fm("s_mov_b32 s67, 0xffff0000"); Fm(f"v_mov_b32 v{vM}, {L_M}")
    for k in range(16): Fm(f"v_mov_b32 v{Q+k}, 0")
    for k in range(4): Fm(f"v_mov_b32 v{T+k}, 0")
    for k in range(4): Fm(f"v_mov_b32 v{O+k}, 0")
    L.extend(pre)
    late_fill = []
    if BAR0 is None:
        A("s_waitcnt lgkmcnt(0)")
        if WSB: A(f"s_add_u32 s30, s30, {WSB}"); A("s_addc_u32 s31, s31, 0")
        stamp(0)
        L.extend(srds); L.extend(post)
    else:
        A("s_waitcnt lgkmcnt(0)")
        if WSB: A(f"s_add_u32 s30, s30, {WSB}"); A("s_addc_u32 s31, s31, 0")
        stamp(0)
        L.extend(srds); A("s_barrier")
        late_fill = post
    K0L = 16640
    vm = {"n": 0, "idx": {}, "done": -1}
    freed = set()
    def emit_issue(op):
        oid, lines, req = op
        assert req is None or req in freed, (oid, req)
        L.extend(lines); vm["idx"][oid] = vm["n"]; vm["n"] += 1
    def emit_need(oid):
        i = vm["idx"][oid]
        if i > vm["done"]:
            A(f"s_waitcnt vmcnt({min(63, vm['n'] - 1 - i)})"); vm["done"] = i
        else:
            A("s_nop 0")
    def cost(t):
        if t.startswith("v_mfma"): return 16
        if t.startswith("v_exp") or t.startswith("v_rcp"): return 8
        if t.startswith("s_nop"): return 4 * (int(t.split()[1]) + 1) if False else 4
        if t.startswith("s_waitcnt lgkm"): return 30
        return 4
    def phase(comp, iss, lead=0.0):
        tot = sum(sum(cost(t) for t in c[1]) if c[0] == "g" else 4 for c in comp)
        acc = 0; k = 0
        for c in comp:
            while k < len(iss) and (k + lead) * tot <= acc * len(iss) and (iss[k][2] is None or iss[k][2] in freed):
                emit_issue(iss[k]); k += 1
            if c[0] == "g": L.extend(c[1]); acc += sum(cost(t) for t in c[1])
            elif c[0] == "need": emit_need(c[1]); acc += 4
            elif c[0] == "free": freed.add(c[1])
        while k < len(iss): emit_issue(iss[k]); k += 1
    def G(*t): return ("g", list(t))
    def mix(a, b):
        out = []; na, nb = len(a), len(b); ia = ib = 0
        while ia < na or ib < nb:
            if ib < nb and (ia >= na or (2 * ib + 1) * na <= 2 * ia * nb): out.append(b[ib]); ib += 1
            else: out.append(a[ia]); ia += 1
        return out
    adv = ["s_add_u32 s75, s75, s72", "s_and_b32 s75, s75, s73"]
    def ld_tile(name, st, srd, vo, prev):
        return [(f"{name}.{k}", [f"buffer_load_dwordx4 v[{st+4*k}:{st+4*k+3}], v{vo}, s[{srd}:{srd+3}], s75 offen nt"] + adv,
                 None if prev is None else f"{prev}.{k}") for k in range(16)]
    def ld_wo(name, srd, lo, hi, req=None):
        return [(f"{name}.{u}", [f"s_add_u32 m0, s79, {1024*u + 32*(u>>1)}", f"s_mov_b32 s78, {4096*u}",
                                 f"buffer_load_dwordx4 v{vW}, s[{srd}:{srd+3}], s78 offen nt lds"], req) for u in range(lo, hi)]
    advB = ["s_add_u32 s74, s74, s72", "s_and_b32 s74, s74, s83"]
    KB = [(f"KB.{k}", [f"buffer_load_dwordx4 v[{X+4*k}:{X+4*k+3}], v{vK}, s[52:55], s74 offen nt"] + advB, None) for k in range(16)]
    VB = [(f"VB.{k}", [f"buffer_load_dwordx4 v[{Y+4*k}:{Y+4*k+3}], v{vV}, s[56:59], s74 offen nt"] + advB, None) for k in range(16)]
    K0 = [(f"K0.{k}", [f"s_add_u32 m0, s79, {K0L + 1024*k}", "s_nop 0", f"buffer_load_dwordx4 v{vK}, s[44:47], s75 offen nt lds"] + adv, None) for k in range(16)]
    C("first loads: K_B, V_B into registers, first K_A tile into LDS, half of wo_B into LDS")
    for n, op in enumerate(mix(KB + VB + K0, ld_wo("WB", 60, 0, 16))):
        if n == PACE + 1: L.extend(late_fill)
        if n > PACE: A(f"s_waitcnt vmcnt({PACE})")
        emit_issue(op)
    stamp(1)
    A("s_barrier")
    stamp(2)

    def extract(u, dst):
        d = DK[u & 1]
        return [G(f"v_mov_b32_dpp v{dst+u}, v{d} quad_perm:[0,0,0,0] row_mask:0xf bank_mask:0xf")] + \
               [G(f"v_add_f32_dpp v{dst+u}, v{d+r}, v{dst+u} quad_perm:[{r},{r},{r},{r}] row_mask:0xf bank_mask:0xf") for r in range(1, 4)]
    def load_q(br):
        c = [G(f"ds_read_b128 v[{OA}:{OA+3}], v{vQ} offset:{br*256}"), G("s_waitcnt lgkmcnt(0)")]
        for j in range(4):
            for k in range(4):
                c.append(G(f"v_mov_b32_dpp v{Q+4*j+k}, v{OA+k} quad_perm:[0,1,2,3] row_mask:0xf bank_mask:{1<<j:#x}"))
        return c
    def ktile(name, st, dst):
        c = []
        for u in range(4):
            d = DK[u & 1]
            for t in range(4):
                k = 4 * u + t
                cc = "0" if t == 0 else f"v[{d}:{d+3}]"
                c.append(("need", f"{name}.{k}"))
                c.append(G(f"v_mfma_f32_16x16x32_bf16 v[{d}:{d+3}], v[{st+4*k}:{st+4*k+3}], v[{Q+4*t}:{Q+4*t+3}], {cc}"))
                c.append(("free", f"{name}.{k}"))
            if u > 0: c += extract(u - 1, dst)
        c.append(G("s_nop 3"))
        return c + extract(3, dst)
    def vtile(name, st, p, extra=None):
        c = []
        for k in range(16):
            u, t = k >> 2, k & 3
            a = AOP[k & 1]
            for j in range(4):
                c.append(G(f"v_and_b32_dpp v{a+j}, v{p+u}, v{MASK+j} row_newbcast:{4*t} row_mask:0xf bank_mask:0xf"))
            c.append(G(*(extra[k] if extra and extra[k] else ["s_nop 0"])))
            c.append(("need", f"{name}.{k}"))
            c.append(G(f"v_mfma_f32_16x16x32_bf16 v[{O}:{O+3}], v[{a}:{a+3}], v[{st+4*k}:{st+4*k+3}], v[{O}:{O+3}]"))
            c.append(("free", f"{name}.{k}"))
        return c
    def wred(op, r):
        return [G("s_nop 1", f"{op}_dpp v{r}, v{r}, v{r} {ctl} bank_mask:0xf") for ctl in
                ("row_ror:4 row_mask:0xf", "row_ror:8 row_mask:0xf", "row_bcast:15 row_mask:0xa", "row_bcast:31 row_mask:0xc")]
    def softmax(n, mslot):
        t0 = OA; c = []
        for rnd in range(2):
            for k in range(0, n, 2): c.append(G(f"v_cvt_pk_bf16_f32 v{t0+k//2}, v{S+k}, v{S+k+1}"))
            for k in range(0, n, 2): c.append(G(f"v_lshlrev_b32 v{S+k}, 16, v{t0+k//2}", f"v_and_b32 v{S+k+1}, s67, v{t0+k//2}"))
            if rnd == 0:
                for k in range(n): c.append(G(f"v_mul_f32 v{S+k}, s65, v{S+k}"))
        c.append(G(f"v_max3_f32 v{t0}, v{S}, v{S+1}, v{S+2}"))
        for k in range(3, n - 1, 2): c.append(G(f"v_max3_f32 v{t0}, v{t0}, v{S+k}, v{S+k+1}"))
        c.append(G(f"v_max_f32 v{t0}, v{t0}, v{S+n-1}"))
        c += wred("v_max_f32", t0)
        c.append(G("s_nop 1", f"v_readlane_b32 s80, v{t0}, 63", f"v_mov_b32 v{t0+2}, s66", "s_nop 1", f"v_mul_f32 v{t0+2}, s80, v{t0+2}"))
        for k in range(n): c.append(G(f"v_fma_f32 v{S+k}, v{S+k}, s66, -v{t0+2}"))
        for k in range(n): c.append(G(f"v_exp_f32 v{S+k}, v{S+k}"))
        c.append(G(f"v_add_f32 v{t0+3}, v{S}, v{S+1}"))
        for k in range(2, n): c.append(G(f"v_add_f32 v{t0+3}, v{t0+3}, v{S+k}"))
        for k in range(n): c.append(G(f"v_cvt_pk_bf16_f32 v{S+k}, v{S+k}, v{S+k}"))
        c += wred("v_add_f32", t0 + 3)
        c.append(G(f"v_mov_b32 v{t0}, s64", "s_mov_b32 exec_lo, 0", "s_mov_b32 exec_hi, 0x80000000",
                   f"ds_write2_b32 v{t0}, v{t0+2}, v{t0+3} offset0:{mslot//4} offset1:{mslot//4+4}", "s_mov_b64 exec, -1"))
        return c
    def kl(dst):
        c = [G(f"v_add_u32 v{OA}, s79, v{vV}"), ("need", "K0.15")]
        rd = lambda k: G(f"ds_read_b128 v[{BT+4*(k%NBT)}:{BT+4*(k%NBT)+3}], v{OA} offset:{K0L + k*1024}")
        for k in range(NBT - 1): c.append(rd(k))
        for k in range(16):
            u, t = k >> 2, k & 3
            d = DK[u & 1]; bt = BT + 4 * (k % NBT)
            cc = "0" if t == 0 else f"v[{d}:{d+3}]"
            c.append(G(f"s_waitcnt lgkmcnt({min(16, k + NBT - 1) - k - 1})",
                       f"v_mfma_f32_16x16x32_bf16 v[{d}:{d+3}], v[{bt}:{bt+3}], v[{Q+4*t}:{Q+4*t+3}], {cc}"))
            if k + NBT - 1 < 16: c.append(rd(k + NBT - 1))
            if t == 3 and u > 0: c += extract(u - 1, dst)
        c.append(("free", "K0L"))
        c.append(G("s_nop 3"))
        return c + extract(3, dst)
    def owrite(br):
        return [G("s_nop 7"), G(f"v_cvt_pk_bf16_f32 v{OA}, v{O}, v{O+1}", f"v_cvt_pk_bf16_f32 v{OA+1}, v{O+2}, v{O+3}"),
                G(f"ds_write_b64 v{vOW}, v[{OA}:{OA+1}] offset:{br*4*O_ROW}"), G("s_waitcnt lgkmcnt(0)")]
    steps = [(cg, kb) for cg in range(8) for kb in range(4)]
    def trread(n, bt):
        cg, kb = steps[n]
        return [f"ds_read_b64_tr_b16 v[{bt+2*rd}:{bt+2*rd+1}], v{TRA + (cg>>1)} offset:{kb*8320 + rd*1024 + (cg&1)*32}" for rd in range(2)]
    def fin(cg):
        d = DK[cg & 1]
        return [G(f"v_fmac_f32_dpp v{T+(cg&3)}, v{d+r}, v{F+r} quad_perm:[0,1,2,3] row_mask:{1<<(cg>>2):#x} bank_mask:0xf") for r in range(4)]
    GG = AOP[0]
    def fprep(n, br):
        if n == 0: return [G(f"v_max3_f32 v{GG+3}, v{F}, v{F+1}, v{F+2}", f"v_max_f32 v{GG+3}, v{GG+3}, v{F+3}")] + [G(f"v_sub_f32 v{F+r}, v{F+r}, v{GG+3}") for r in range(4)]
        if n == 1: return [G(f"v_exp_f32 v{F+r}, v{F+r}") for r in range(4)]
        if n == 2 and br == 0: return [G(f"v_mul_f32 v{T+r}, v{T+r}, v{GG+1}") for r in range(4)]
        if n == 3 and br == 0: return [G(f"v_mul_f32 v{F+r}, v{F+r}, v{GG}") for r in range(4)]
        return []
    def out_b():
        c = [G(f"ds_read_b128 v[{OA+4*kb}:{OA+4*kb+3}], v{vOR} offset:{4*O_ROW + kb*64}") for kb in range(4)]
        c.append(G(f"ds_read_b128 v[{F}:{F+3}], v{vM} offset:64"))
        nread = 5
        for n in range(nread): c.append(G(*trread(n, BT + 4 * (n % NBT))))
        for n, (cg, kb) in enumerate(steps):
            d = DK[cg & 1]; bt = BT + 4 * (n % NBT)
            cc = "0" if kb == 0 else f"v[{d}:{d+3}]"
            c.append(G(f"s_waitcnt lgkmcnt({2*(nread - n - 1)})",
                       f"v_mfma_f32_16x16x32_bf16 v[{d}:{d+3}], v[{OA+4*kb}:{OA+4*kb+3}], v[{bt}:{bt+3}], {cc}"))
            while nread < 32 and nread - n - 1 < NBT - 1 and 2 * (nread - n) <= 14:
                c.append(G(*trread(nread, BT + 4 * (nread % NBT)))); nread += 1
            c += fprep(n, 1)
            if kb == 3 and cg > 0: c += fin(cg - 1)
        c.append(("free", "WO"))
        c.append(G("s_nop 3"))
        return c + fin(7)

    K1 = ld_tile("K1", X, 44, vK, "KB"); K2 = ld_tile("K2", Y, 44, vK, "VB"); K3 = ld_tile("K3", X, 44, vK, "K1")
    V0 = ld_tile("V0", Y, 48, vV, "K2"); V1 = ld_tile("V1", X, 48, vV, "K3"); V2 = ld_tile("V2", Y, 48, vV, "V0"); V3 = ld_tile("V3", X, 48, vV, "V1")
    WBu = ld_wo("WB", 60, 16, 32, "K0L"); WA = ld_wo("WA", 84, 0, 32, "WO")
    D3 = DEFER
    phase(load_q(1) + ktile("KB", X, S) + softmax(4, 64) + load_q(0) + kl(S + 4), K1)
    stamp(3)
    phase(vtile("VB", Y, S) + owrite(1), mix(K2, WBu), lead=-1)
    stamp(4)
    phase(ktile("K1", X, S), K3[:16 - D3], lead=-1)
    emit_need("WB.31")
    stamp(5)
    A("s_barrier")
    stamp(6)
    phase(out_b(), K3[16 - D3:])
    stamp(7)
    w0, w1, w2 = WSPLIT
    phase(ktile("K2", Y, S + 8), mix(V0, WA[:w0]), lead=-1)
    phase(ktile("K3", X, S + 12) + softmax(16, 0) + [G(f"v_mov_b32 v{O+k}, 0") for k in range(4)], mix(V1, WA[w0:w1]))
    stamp(8)
    sig = [G(f"v_mov_b32 v{OA}, {L_P}", f"ds_write_b32 v{OA}, v{OA}")]
    phase(vtile("V0", Y, S + 4) + sig, mix(V2, WA[w1:w2]), lead=-1)
    phase(vtile("V1", X, S), mix(V3[:10], WA[w2:]) + V3[10:], lead=-1)
    phase(vtile("V2", Y, S + 8), [])
    dst = [BT + 4 * n for n in range(NBT)] + [Y + 4 * n for n in range(16)] + [X + 4 * n for n in range(32 - 16 - NBT)]
    emit_need("WA.31")
    extra = [[] for _ in range(16)]
    nx = 0
    for k in range(16):
        lim = NBT + 16 + max(0, k - 1)
        cnt = 0
        while nx < 32 and nx < lim and cnt < 3:
            extra[k] += trread(nx, dst[nx]); nx += 1; cnt += 1
    assert nx == 32
    phase(vtile("V3", X, S + 12, extra), [])
    stamp(9)
    phase(owrite(0), [])
    A("s_barrier")
    stamp(10)
    C("output projection of branch A, mix, publish")
    c = [G(f"ds_read_b128 v[{OA+4*kb}:{OA+4*kb+3}], v{vOR} offset:{kb*64}") for kb in range(4)]
    TG = AOP[1]
    c.append(G(f"ds_read_b128 v[{F}:{F+3}], v{vM}", f"ds_read_b128 v[{GG}:{GG+3}], v{vM} offset:32", f"ds_read_b128 v[{TG}:{TG+3}], v{vM} offset:{L_T-L_M}"))
    for n, (cg, kb) in enumerate(steps):
        d = DK[cg & 1]
        cc = "0" if kb == 0 else f"v[{d}:{d+3}]"
        if n < 4: c.append(G(f"s_waitcnt lgkmcnt({[6, 5, 4, 0][n]})"))
        c.append(G(f"v_mfma_f32_16x16x32_bf16 v[{d}:{d+3}], v[{OA+4*kb}:{OA+4*kb+3}], v[{dst[n]}:{dst[n]+3}], {cc}"))
        if 3 <= n < 7: c += fprep(n - 3, 0)
        if kb == 3 and cg > 0:
            if cg > 1: c.append(G("s_nop 0"))
            c += fin(cg - 1)
    c.append(G("s_nop 3"))
    c += fin(7)
    c += [G(f"v_bfi_b32 v{OA+k}, s82, v{TG+k}, v{T+k}") for k in range(4)]
    c.append(G(f"buffer_store_dwordx4 v[{OA}:{OA+3}], v{vY}, s[68:71], 0 offen sc1"))
    phase(c, [])
    stamp(11)
    if comm_off != 4:
        C("final sum over the 128 producers of a batch: four output columns per wave")
        A("s_cmp_lg_u32 s89, 0"); A("s_cbranch_scc1 L_wend")
        A(f"v_add_u32 v{Q}, 0x20000, v{vG}")
        A("s_mov_b64 s[4:5], -1"); A("s_mov_b64 s[6:7], -1")
        A("L_wpoll:")
        for t in range(2):
            A(f"s_mov_b64 exec, s[{4+2*t}:{5+2*t}]")
            A(f"global_load_dwordx4 v[{X+4*t}:{X+4*t+3}], v{vG if t == 0 else Q}, s[30:31] sc1")
        A("s_mov_b64 exec, -1")
        for t in range(2):
            A(f"s_waitcnt vmcnt({1-t})")
            d = Y + 4 * t
            for k in range(4): A(f"v_xor_b32 v{d+k}, v{TG+k}, v{X+4*t+k}")
            A(f"v_or3_b32 v{S}, v{d}, v{d+1}, v{d+2}"); A(f"v_or_b32 v{S}, v{S}, v{d+3}"); A(f"v_and_b32 v{S}, s82, v{S}")
            A(f"v_cmp_ne_u32 s[{4+2*t}:{5+2*t}], 0, v{S}")
        A(f"v_pk_add_f32 v[{Y}:{Y+1}], v[{Y}:{Y+1}], v[{Y+4}:{Y+5}]"); A(f"v_pk_add_f32 v[{Y+2}:{Y+3}], v[{Y+2}:{Y+3}], v[{Y+6}:{Y+7}]")
        A("s_or_b64 s[20:21], s[4:5], s[6:7]")
        A("s_cbranch_scc0 L_wok")
        A("s_sub_u32 s90, s90, 1"); A("s_cbranch_scc0 L_wpoll")
        A("L_wok:")
        A(f"v_permlane32_swap_b32 v{Y}, v{Y+2}"); A(f"v_permlane32_swap_b32 v{Y+1}, v{Y+3}")
        A(f"v_add_f32 v{Y}, v{Y}, v{Y+2}"); A(f"v_add_f32 v{Y+1}, v{Y+1}, v{Y+3}"); A("s_nop 1")
        A(f"v_permlane16_swap_b32 v{Y}, v{Y+1}")
        A(f"v_add_f32 v{Y}, v{Y}, v{Y+1}")
        for r in (1, 2, 4, 8):
            A("s_nop 1"); A(f"v_add_f32_dpp v{Y}, v{Y}, v{Y} row_ror:{r} row_mask:0xf bank_mask:0xf")
        A(f"v_cvt_pk_bf16_f32 v{Y}, v{Y}, v{Y}")
        A(f"buffer_store_short v{Y}, v{vO}, s[92:95], 0 offen")
        stamp(12)
        C("every workgroup has read the epoch by now: advance it")
        A("s_cmp_lg_u32 s88, 0"); A("s_cbranch_scc1 L_wend")
        A(f"ds_read_b64 v[{Y+8}:{Y+9}], v{vM} offset:{L_T - L_M + 16}"); A(f"v_mov_b32 v{Y+10}, {WS_E}")
        A("s_waitcnt lgkmcnt(0)")
        A("s_mov_b64 exec, 1")
        A(f"global_store_dwordx2 v{Y+10}, v[{Y+8}:{Y+9}], s[30:31]")
        A("s_mov_b64 exec, -1")
        A("L_wend:")
    stamp_flush()
    A("s_endpgm")
    A("L_codeend:")
    A('.section .rodata,"a"'); A(".p2align 6"); A(f".amdhsa_kernel {KN}")
    A("  .amdhsa_next_free_vgpr 256"); A("  .amdhsa_next_free_sgpr 100"); A("  .amdhsa_accum_offset 256")
    A("  .amdhsa_group_segment_fixed_size 0"); A("  .amdhsa_kernarg_size 112"); A("  .amdhsa_user_sgpr_count 2")
    A("  .amdhsa_user_sgpr_kernarg_segment_ptr 1"); A("  .amdhsa_system_sgpr_workgroup_id_x 1")
    A("  .amdhsa_float_denorm_mode_32 3")
    A(".end_amdhsa_kernel")
    open(path, "w").write("\n".join(L) + "\n")

if __name__ == "__main__":
    gen(sys.argv[1], stamps=(len(sys.argv) > 2 and sys.argv[2] == "st"))
```

```python
import sys, struct
KN = "gated_mix__gqa_block_cached__sliding_block_cached__decode_kernel"
def f2u(x): return struct.unpack("<I", struct.pack("<f", x))[0]

WS_QP = 0x0
WS_ML = 0x80000
WS_E  = 0x98000
WS_Y  = 0x100000
WS_ST = 0x200000
TB = 10
WO_SLICE = 33280
L_O = 4 * WO_SLICE
O_ROW = 576
L_Q = L_O + 8 * O_ROW
L_M = L_Q + 512
L_P = L_M + 128
L_T = L_P + 16
LDS_BYTES = L_T + 32

HEAD = """; gated mix of two cached-attention decode blocks, one fused launch (generated by the author's own script).
;   wave 0     : 1/8 of the head's q projection (shared through d_ws), gate, softmax statistics exchange
;   waves 1..4 : stream K then V (nt loads), scores/softmax/PV on MFMA, output projection from LDS,
"""

def gen(path, stamps=False, PACE=9, spin=400000, comm_off=0, WSB=0, ROT=13, DEFER=6, WSPLIT=(9, 19, 28), cpf=True,
        qretry=4, lsleep=8, mlsleep=10, BAR0=None, qsleep=0, gate_first=True, CMAP=0, HX=0, XF='', NF=0, P1A=None, WBI=None, WBX=0, K0MID=False, CAP=None, CAPEND=999, RB=None, RA=None, abl=(), QF='sc1', OST='', SAMP=0x00010001, amp=None):
    L = []
    A = L.append
    role = ["comm"]
    def stamp(k):
        if amp and role[0] == "comp" and amp[0] == k:
            A("s_memrealtime s[96:97]"); A("s_waitcnt lgkmcnt(0)")
        if stamps:
            A("s_memrealtime s[96:97]"); A("s_waitcnt lgkmcnt(0)"); A(f"v_writelane_b32 v19, s96, {k}")
    def stamp_flush():
        if stamps:
            A("s_lshl_b32 s96, s2, 3"); A("s_add_u32 s96, s96, s38"); A("s_lshl_b32 s96, s96, 8"); A(f"s_add_u32 s96, s96, {WS_ST}")
            A("s_getreg_b32 s97, hwreg(HW_REG_XCC_ID)"); A("v_writelane_b32 v19, s97, 63")
            A("v_lshlrev_b32 v18, 2, v0"); A("v_add_u32 v18, s96, v18")
            A("global_store_dword v18, v19, s[30:31]")
    def C(t): A("; " + t)

    L.extend(HEAD.rstrip().split("\n"))
    L_F0 = (LDS_BYTES + 15) // 16 * 16
    A(f"; @launch grid=(256,1,1) block=(320,1,1) lds={L_F0 + 4096 * NF}")
    A('.amdgcn_target "amdgcn-amd-amdhsa--gfx950"')
    A(".text"); A(f".globl {KN}"); A(".p2align 8"); A(f".type {KN},@function"); A(f"{KN}:")
    A("s_cmp_ge_u32 s2, 256"); A("s_cbranch_scc1 L_end")
    if amp: A("s_memrealtime s[98:99]")
    A("s_load_dwordx16 s[4:19], s[0:1], 0")
    A("s_load_dwordx8 s[20:27], s[0:1], 64")
    A("s_load_dwordx4 s[28:31], s[0:1], 96")
    A("v_lshrrev_b32 v1, 6, v0")
    A("s_and_b32 s32, s2, 7"); A("s_lshr_b32 s33, s2, 3")
    A("v_readfirstlane_b32 s38, v1")
    A("v_and_b32 v0, 63, v0")
    A("s_lshr_b32 s34, s33, 3"); A("s_lshl2_add_u32 s34, s32, s34          ; h")
    if HX: A(f"s_xor_b32 s34, s34, {HX}")
    A("s_and_b32 s35, s33, 7")
    A("s_lshr_b32 s36, s35, 2                  ; b")
    A("s_and_b32 s37, s35, 3                   ; s")
    A("v_lshrrev_b32 v16, 4, v0")
    A("v_and_b32 v17, 15, v0")
    if stamps: A("v_mov_b32 v19, 0")
    A("s_cmp_lg_u32 s38, 0"); A("s_cbranch_scc1 L_comp")

    C("================ wave 0 ================")
    if cpf:
        C("pull one KiB of this kernel's code towards the L2 so that later instruction fetches hit there")
        A("s_getpc_b64 s[40:41]"); A("L_pf:")
        A("s_lshl_b32 s42, s33, 10"); A("s_min_u32 s42, s42, L_codeend-L_pf-1024"); A("s_and_b32 s42, s42, -16"); A("s_and_b32 s40, s40, -16")
        A("v_lshl_add_u32 v1, v0, 4, s42")
        A("global_load_dwordx4 v[48:51], v1, s[40:41]")
    A("s_setprio 3")
    WQ, AOPS, XV, SEL, DQ = 128, 64, 20, 36, 52
    C("rows [128*rb, 128*rb+128) of wq_br (br = jj&1, rb = jj>>1), this head's 128 columns, both batches")
    A("s_and_b32 s53, s35, 1"); A("s_lshr_b32 s43, s35, 1")
    A("v_lshlrev_b32 v1, 18, v16"); A("v_lshl_add_u32 v1, v17, 4, v1")
    A("v_lshrrev_b32 v2, 3, v17"); A("v_lshlrev_b32 v2, 10, v2"); A("v_lshl_add_u32 v2, v16, 6, v2")
    A("s_lshl_b32 s40, s43, 8"); A("v_add_u32 v2, s40, v2")
    A("s_lshl_b32 s40, s43, 20"); A("s_lshl_b32 s41, s34, 8"); A("s_add_u32 s40, s40, s41")
    A("s_mov_b32 s46, 0x100000"); A("s_mov_b32 s47, 0x20000")
    A("s_mov_b32 s72, 0"); A("s_movk_i32 s73, 0x2000")
    A("s_cmp_eq_u32 s53, 0")
    A("s_waitcnt lgkmcnt(0)")
    A("s_cselect_b32 s44, s10, s20"); A("s_cselect_b32 s45, s11, s21")
    if WSB: A(f"s_add_u32 s30, s30, {WSB}"); A("s_addc_u32 s31, s31, 0")
    stamp(0)
    for k in range(4): A(f"global_load_dwordx4 v[{XV+4*k}:{XV+4*k+3}], v2, s[4:5] offset:{16*k} {XF}")
    A("s_add_u32 s44, s44, s40"); A("s_addc_u32 s45, s45, 0")
    A(f"s_load_dwordx2 s[92:93], s[30:31], {WS_E}")
    for t in range(32):
        A(f"buffer_load_dwordx4 v[{WQ+4*t}:{WQ+4*t+3}], v1, s[44:47], s72 offen nt")
        if t < 31: A("s_add_u32 s72, s72, s73")
        if BAR0 is not None and t == BAR0: A("s_barrier")
    A("v_lshlrev_b32 v60, 4, v0")
    C("byte selectors that place x on the diagonal of the A operand")
    A("v_and_b32 v8, 1, v17"); A("v_lshlrev_b32 v8, 4, v8")
    A("v_bfe_u32 v9, v17, 1, 2")
    A("v_mov_b32 v15, 0x0c0c0c0c")
    for hs in range(2):
        src = 0x0100 if hs == 0 else 0x0302
        A(f"v_mov_b32 v10, {src ^ 0x0c0c:#x}"); A("v_lshlrev_b32 v10, v8, v10"); A("v_xor_b32 v10, v10, v15")
        for j in range(4):
            A(f"v_cmp_eq_u32 vcc, {j}, v9"); A("s_nop 1"); A(f"v_cndmask_b32 v{SEL+4*hs+j}, v15, v10, vcc")
    A("s_lshl_b32 s40, s34, 13"); A("s_lshl_b32 s41, s53, 12"); A("s_add_u32 s41, s40, s41"); A("s_lshl_b32 s42, s43, 10"); A("s_add_u32 s41, s41, s42")
    A("v_add_u32 v62, s41, v60")
    A("s_lshl_b32 s42, s36, 9"); A("s_add_u32 s40, s40, s42")
    A("v_lshrrev_b32 v5, 5, v0"); A("v_lshlrev_b32 v3, 12, v5"); A("v_and_b32 v4, 31, v0"); A("v_lshl_add_u32 v3, v4, 4, v3")
    A("v_add_u32 v3, s40, v3")
    A("v_lshlrev_b32 v5, 8, v5"); A("v_lshl_add_u32 v5, v17, 4, v5"); A("v_and_b32 v6, 1, v16"); A("v_lshl_add_u32 v5, v6, 3, v5")
    A(f"v_add_u32 v5, {L_Q}, v5")
    C("tag of this launch (differs from the epoch word, hence from every word an earlier launch tagged)")
    A("s_waitcnt lgkmcnt(0)")
    A("s_mul_i32 s92, s92, 0x9e3779b1"); A("s_add_u32 s92, s92, 0x7f4a7c15")
    A("s_mul_i32 s93, s93, 0x85ebca6d"); A("s_add_u32 s93, s93, 0x2545f491")
    A(f"s_bfe_u32 s84, s92, {(TB << 16) | 0:#x}"); A(f"s_bfe_u32 s85, s92, {(TB << 16) | 16:#x}")
    A(f"s_bfe_u32 s86, s93, {(TB << 16) | 0:#x}"); A(f"s_bfe_u32 s87, s93, {(TB << 16) | 16:#x}")
    A("v_mov_b32 v8, s92"); A("v_mov_b32 v9, s93"); A("v_and_b32 v10, 2, v0"); A("v_cmp_eq_u32 vcc, 0, v10"); A("v_and_b32 v10, 1, v0")
    A("s_and_b32 s41, s92, 1")
    A("v_cndmask_b32 v8, v9, v8, vcc"); A("v_lshlrev_b32 v10, 4, v10"); A("v_lshrrev_b32 v8, v10, v8")
    for k in range(4):
        A(f"v_bfe_u32 v{12+k}, v8, {4*k+1}, 3"); A(f"v_lshl_or_b32 v{12+k}, v{12+k}, 1, s41")
    A("v_lshlrev_b32 v6, 2, v0"); A(f"v_add_u32 v6, {L_M}, v6"); A("v_mov_b32 v7, 0")
    for k in range(4): A(f"v_writelane_b32 v7, s{84+k}, {36+k}")
    A("v_writelane_b32 v7, s92, 40"); A("v_writelane_b32 v7, s93, 41")
    A("s_mov_b32 exec_hi, 0x3ff")
    A("ds_write_b32 v6, v7")
    A("s_mov_b64 exec, -1")
    A("s_waitcnt vmcnt(32)")
    def perms(t):
        for j in range(4):
            A(f"v_perm_b32 v{AOPS+4*(t&15)+j}, v{XV+(t>>1)}, v{XV+(t>>1)}, v{SEL+4*(t&1)+j}")
    for t in range(16): perms(t)
    for t in range(32):
        A(f"s_waitcnt vmcnt({31 - t})")
        c = "0" if t == 0 else f"v[{DQ}:{DQ+3}]"
        A(f"v_mfma_f32_16x16x32_bf16 v[{DQ}:{DQ+3}], v[{AOPS+4*(t&15)}:{AOPS+4*(t&15)+3}], v[{WQ+4*t}:{WQ+4*t+3}], {c}")
        if t < 16: perms(t + 16)
    A("s_lshl_b32 s41, s36, 10"); A("v_add_u32 v7, s41, v60")
    A("s_nop 5")
    for k in range(4): A(f"v_bfi_b32 v{8+k}, 15, v{12+k}, v{DQ+k}")
    A(f"global_store_dwordx4 v62, v[8:11], s[30:31] {QF}")
    stamp(1)
    A("global_load_dwordx4 v[44:47], v7, s[4:5]"); A("global_load_dwordx4 v[48:51], v60, s[24:25]")
    def gate_and_setup():
        C("gate g = sigmoid(sum(x*gate_w)) with the reference's bf16 roundings")
        A("s_mov_b32 s67, 0xffff0000")
        for k in range(4):
            A(f"v_lshlrev_b32 v52, 16, v{44+k}"); A(f"v_and_b32 v53, s67, v{44+k}")
            A(f"v_lshlrev_b32 v54, 16, v{48+k}"); A(f"v_and_b32 v55, s67, v{48+k}")
            A("v_mul_f32 v52, v52, v54"); A("v_mul_f32 v53, v53, v55")
            A("v_cvt_pk_bf16_f32 v52, v52, v53")
            A("v_lshlrev_b32 v53, 16, v52"); A("v_and_b32 v52, s67, v52")
            if k == 0: A("v_add_f32 v56, v52, v53")
            else: A("v_add_f32 v56, v56, v52"); A("v_add_f32 v56, v56, v53")
        for ctl in ("row_ror:1 row_mask:0xf", "row_ror:2 row_mask:0xf", "row_ror:4 row_mask:0xf", "row_ror:8 row_mask:0xf", "row_bcast:15 row_mask:0xa", "row_bcast:31 row_mask:0xc"):
            A("s_nop 1"); A(f"v_add_f32_dpp v56, v56, v56 {ctl} bank_mask:0xf")
        A("v_cvt_pk_bf16_f32 v56, v56, v56"); A("v_and_b32 v56, s67, v56")
        A(f"v_mul_f32 v56, {f2u(-1.4426950408889634):#x}, v56"); A("v_exp_f32 v56, v56"); A("s_nop 0")
        A("v_add_f32 v56, 1.0, v56"); A("v_rcp_f32 v56, v56"); A("s_nop 0")
        A("v_cvt_pk_bf16_f32 v56, v56, v56"); A("v_and_b32 v56, s67, v56")
        A("v_sub_f32 v57, 1.0, v56"); A("v_cvt_pk_bf16_f32 v57, v57, v57"); A("v_and_b32 v57, s67, v57")
        A("s_nop 1"); A("v_readlane_b32 s54, v56, 63"); A("v_readlane_b32 s55, v57, 63")
        C("statistics lines of this (b,h): lane = 4*br + s'")
        A("s_lshl_b32 s52, s36, 5"); A("s_add_u32 s52, s52, s34"); A("s_lshl_b32 s52, s52, 9"); A(f"s_add_u32 s52, s52, {WS_ML}")
        A("v_and_b32 v27, 3, v0"); A("v_lshlrev_b32 v26, 7, v27"); A("v_bfe_u32 v25, v0, 2, 1"); A("v_lshl_add_u32 v26, v25, 4, v26"); A("v_add_u32 v26, s52, v26")
        A("v_lshlrev_b32 v27, 2, v27"); A("v_lshl_add_u32 v27, v25, 6, v27"); A(f"v_add_u32 v27, {L_M}, v27")
        A(f"v_mov_b32 v28, {L_M}"); A("v_lshl_add_u32 v29, v25, 2, v28")
        A("v_mov_b32 v30, s54"); A("v_mov_b32 v31, s55"); A("v_cmp_eq_u32 vcc, 1, v25"); A("s_nop 1"); A("v_cndmask_b32 v30, v30, v31, vcc")
        A("s_lshl_b32 s58, 0x11, s37"); A("s_mov_b32 s59, 0")
        A("v_mov_b32 v33, s92"); A("v_mov_b32 v35, s93")
    A("s_waitcnt vmcnt(0)")
    stamp(2)
    if gate_first: gate_and_setup()
    if qsleep: A(f"s_sleep {qsleep}")
    A(f"s_mov_b32 s90, {spin}")
    C("the four partial q rows of both branches: accepted when every word carries the tag in the same pass")
    A("L_qd:")
    for p in range(4): A(f"global_load_dwordx4 v[{64+4*p}:{64+4*p+3}], v3, s[30:31] offset:{p*1024} {QF}")
    A("s_waitcnt vmcnt(0)")
    for p in range(4):
        for k in range(4): A(f"v_xor_b32 v{64+4*p+k}, v{12+k}, v{64+4*p+k}")
    A("v_or3_b32 v8, v64, v65, v66")
    for k in range(67, 79, 2): A(f"v_or3_b32 v8, v8, v{k}, v{k+1}")
    A("v_or_b32 v8, v8, v79"); A("v_and_b32 v8, 15, v8")
    A("v_cmp_ne_u32 vcc, 0, v8"); A("s_nop 1")
    A("s_cmp_eq_u64 vcc, 0"); A("s_cbranch_scc1 L_qd_ok")
    A(f"s_sleep {qretry}")
    A("s_sub_u32 s90, s90, 1"); A("s_cbranch_scc0 L_qd")
    A("L_qd_ok:")
    if stamps: A("v_writelane_b32 v19, s90, 20")
    for k in range(0, 4, 2):
        A(f"v_pk_add_f32 v[{64+k}:{65+k}], v[{64+k}:{65+k}], v[{68+k}:{69+k}]"); A(f"v_pk_add_f32 v[{72+k}:{73+k}], v[{72+k}:{73+k}], v[{76+k}:{77+k}]")
    for k in range(0, 4, 2):
        A(f"v_pk_add_f32 v[{8+k}:{9+k}], v[{64+k}:{65+k}], v[{72+k}:{73+k}]")
    A("v_cvt_pk_bf16_f32 v8, v8, v9"); A("v_cvt_pk_bf16_f32 v9, v10, v11")
    A("ds_write_b64 v5, v[8:9]")
    A("s_waitcnt lgkmcnt(0)")
    stamp(4)
    A("s_barrier")
    A("s_setprio 0")
    if comm_off == 3:
        A("s_barrier"); A("s_barrier"); stamp(10); stamp_flush(); A("s_endpgm")
    if not gate_first: gate_and_setup()
    stamp(5)
    A("s_barrier                               ; 2")
    stamp(6)
    def qcomb():
        A("v_mov_b32 v32, v8")
        for qp in ("[1,0,3,2]", "[2,3,0,1]"):
            A("s_nop 1"); A(f"v_max_f32_dpp v32, v32, v32 quad_perm:{qp} row_mask:0xf bank_mask:0xf")
        A("v_sub_f32 v8, v8, v32"); A("v_exp_f32 v8, v8"); A("s_nop 0")
        A("v_mul_f32 v34, v10, v8")
        for qp in ("[1,0,3,2]", "[2,3,0,1]"):
            A("s_nop 1"); A(f"v_add_f32_dpp v34, v34, v34 quad_perm:{qp} row_mask:0xf bank_mask:0xf")
    C("wait for the four waves' (max,sum) of both branches, publish this workgroup's")
    A(f"s_mov_b32 s90, {spin*4}")
    A("L_wl:")
    A(f"s_sleep {lsleep}")
    A("ds_read_b32 v10, v27 offset:16")
    A("s_waitcnt lgkmcnt(0)")
    A("v_cmp_eq_u32 vcc, 0, v10"); A("s_nop 1")
    A("s_cmp_eq_u64 vcc, 0"); A("s_cbranch_scc1 L_wl_ok")
    A("s_sub_u32 s90, s90, 1"); A("s_cbranch_scc0 L_wl")
    A("L_wl_ok:")
    A("ds_read_b32 v8, v27")
    A("s_waitcnt lgkmcnt(0)")
    qcomb()
    A("v_mov_b32 v36, v8")
    A("s_mov_b64 exec, s[58:59]")
    A("global_store_dwordx4 v26, v[32:35], s[30:31] sc1")
    A("s_mov_b64 exec, -1")
    stamp(7)
    C("once the stream has moved on, collect the four splits' statistics")
    A(f"s_mov_b32 s90, {spin*4}")
    A("L_wp:")
    A(f"s_sleep {lsleep}")
    A("ds_read_b32 v9, v28 offset:128")
    A("s_waitcnt lgkmcnt(0)")
    A("v_readfirstlane_b32 s41, v9"); A("s_nop 1")
    A("s_cmp_lg_u32 s41, 0"); A("s_cbranch_scc1 L_wp_ok")
    A("s_sub_u32 s90, s90, 1"); A("s_cbranch_scc0 L_wp")
    A("L_wp_ok:")
    A(f"s_mov_b32 s90, {spin}")
    A("s_mov_b64 exec, 0xff")
    A("L_ml:")
    A("global_load_dwordx4 v[8:11], v26, s[30:31] sc1")
    A("s_waitcnt vmcnt(0)")
    A("v_xor_b32 v9, s92, v9"); A("v_xor_b32 v11, s93, v11"); A("v_or_b32 v9, v9, v11")
    A("v_cmp_ne_u32 vcc, 0, v9"); A("s_nop 1")
    A("s_cmp_eq_u64 vcc, 0"); A("s_cbranch_scc1 L_ml_ok")
    A(f"s_sleep {mlsleep}")
    A("s_sub_u32 s90, s90, 1"); A("s_cbranch_scc0 L_ml")
    A("L_ml_ok:")
    qcomb()
    A("v_rcp_f32 v34, v34"); A("v_mul_f32 v8, v30, v8"); A("v_mul_f32 v8, v8, v34")
    A("s_mov_b64 exec, s[58:59]")
    A("ds_write_b32 v29, v8 offset:32")
    A("v_readlane_b32 s41, v8, s37")
    A("s_mov_b64 exec, 0xf"); A("s_nop 0")
    A("v_mul_f32 v36, s41, v36")
    A("ds_write_b32 v27, v36 offset:48")
    A("s_mov_b64 exec, -1")
    A("s_waitcnt lgkmcnt(0)")
    stamp(9)
    A("s_barrier                               ; 3")
    stamp(10)
    stamp_flush()
    A("L_end:")
    A("s_endpgm")

    vK, vV, vN, vW = 1, 2, 3, 4
    MASK = 5
    vOW, vOR = 9, 10
    TRA = 11
    vY = 15
    Q, S = 20, 36
    vM, vQ, vG, vO = 52, 53, 54, 55
    AOP = [56, 60]
    DK = [64, 68]
    O, T, F, OA = 72, 76, 80, 84
    BT, NBT = 100, 7
    X, Y = 128, 192
    C("================ waves 1..4 ================")
    role[0] = "comp"
    A("L_comp:")
    pre = []; post = []
    P_ = pre.append; Fm = post.append
    P_("s_sub_u32 s39, s38, 1")
    P_("s_lshl_b32 s75, s36, 5"); P_("s_add_u32 s75, s75, s34"); P_("s_lshl_b32 s40, s75, 20")
    P_(f"s_mul_i32 s75, s75, {ROT}"); P_("s_add_u32 s75, s75, s39"); P_("s_lshl_b32 s75, s75, 10")
    P_("s_lshl_b32 s41, s37, 16"); P_("s_add_u32 s41, s41, s40"); P_(f"s_add_u32 s41, s41, {3072*256}")
    P_(f"v_lshrrev_b32 v{vK}, 2, v17"); P_(f"v_lshlrev_b32 v{vK}, 8, v{vK}"); P_(f"v_lshl_add_u32 v{vK}, v16, 6, v{vK}")
    P_(f"v_and_b32 v{vN}, 3, v0"); P_(f"v_lshl_add_u32 v{vK}, v{vN}, 4, v{vK}")
    P_(f"v_lshlrev_b32 v{vV}, 4, v0")
    P_(f"v_lshlrev_b32 v{vW}, 4, v17"); P_(f"v_lshlrev_b32 v{OA}, 6, v16"); P_(f"v_xor_b32 v{vW}, v{vW}, v{OA}"); P_(f"v_lshl_add_u32 v{vW}, v16, 10, v{vW}")
    P_("s_movk_i32 s72, 0x1000"); P_("s_mov_b32 s73, 0x3ffff"); P_("s_mov_b32 s83, 0xffff")
    def rotreg(dst, spec):
        mode, r = spec
        if mode == "wg": P_(f"s_mul_i32 {dst}, s2, {r}")
        elif mode == "bh": P_(f"s_lshr_b32 {dst}, s40, 20"); P_(f"s_mul_i32 {dst}, {dst}, {r}")
        elif mode == "j": P_(f"s_mul_i32 {dst}, s33, {r}")
        elif mode == "x": P_(f"s_mul_i32 {dst}, s32, {r}")
        P_(f"s_add_u32 {dst}, {dst}, s39"); P_(f"s_lshl_b32 {dst}, {dst}, 10")
    if RB: rotreg("s74", RB); P_("s_and_b32 s74, s74, s83")
    else: P_("s_and_b32 s74, s75, s83")
    if RA: rotreg("s75", RA)
    P_("s_and_b32 s75, s75, s73")
    P_("s_mov_b32 s54, 0x10000"); P_("s_mov_b32 s55, 0x20000"); P_("s_mov_b32 s58, 0x10000"); P_("s_mov_b32 s59, 0x20000")
    P_("s_mov_b32 s62, 0x20000"); P_("s_mov_b32 s63, 0x20000")
    P_("s_lshl_b32 s42, s34, 17"); P_("s_lshl_b32 s43, s39, 8"); P_("s_add_u32 s42, s42, s43")
    P_(f"s_mul_i32 s79, s39, {WO_SLICE}")
    if NF: P_(f"s_mul_i32 s77, s39, {1024*NF}"); P_(f"s_add_u32 s77, s77, {L_F0}")
    P_("s_lshl_b32 s80, s37, 18"); P_("s_add_u32 s80, s80, s40")
    srds = ["s_add_u32 s52, s16, s41", "s_addc_u32 s53, s17, 0", "s_add_u32 s56, s18, s41", "s_addc_u32 s57, s19, 0",
            "s_add_u32 s60, s22, s42", "s_addc_u32 s61, s23, 0",
            "s_add_u32 s44, s6, s80", "s_addc_u32 s45, s7, 0", "s_add_u32 s48, s8, s80", "s_addc_u32 s49, s9, 0",
            "s_add_u32 s84, s12, s42", "s_addc_u32 s85, s13, 0", "s_add_u32 s68, s30, s81", "s_addc_u32 s69, s31, 0",
            "s_mov_b32 s92, s26", "s_mov_b32 s93, s27"]
    Fm("s_mov_b32 s46, 0x40000"); Fm("s_mov_b32 s47, 0x20000"); Fm("s_mov_b32 s50, 0x40000"); Fm("s_mov_b32 s51, 0x20000")
    Fm("s_mov_b32 s86, 0x20000"); Fm("s_mov_b32 s87, 0x20000")
    Fm(f"v_and_b32 v{OA}, 1, v17"); Fm(f"v_lshlrev_b32 v{OA}, 4, v{OA}"); Fm(f"v_mov_b32 v{OA+1}, 0xffff")
    Fm(f"v_lshlrev_b32 v{OA}, v{OA}, v{OA+1}"); Fm(f"v_lshrrev_b32 v{OA+1}, 1, v17")
    for j in range(4):
        Fm(f"v_cmp_eq_u32 vcc, {j}, v{OA+1}"); Fm("s_nop 1"); Fm(f"v_cndmask_b32 v{MASK+j}, 0, v{OA}, vcc")
    Fm(f"s_mul_i32 s43, s39, {O_ROW}"); Fm(f"s_add_u32 s43, s43, {L_O}")
    Fm(f"v_lshrrev_b32 v{vOW}, 1, v16"); Fm(f"v_lshlrev_b32 v{vOW}, 8, v{vOW}"); Fm(f"v_lshl_add_u32 v{vOW}, v17, 4, v{vOW}")
    Fm(f"v_and_b32 v{OA}, 1, v16"); Fm(f"v_lshl_add_u32 v{vOW}, v{OA}, 3, v{vOW}"); Fm(f"v_add_u32 v{vOW}, s43, v{vOW}")
    Fm(f"v_mul_u32_u24 v{vOR}, {O_ROW}, v{vN}"); Fm(f"v_lshl_add_u32 v{vOR}, v16, 4, v{vOR}"); Fm(f"v_add_u32 v{vOR}, {L_O}, v{vOR}")
    Fm(f"v_lshl_add_u32 v{vQ}, v16, 2, v{vN}"); Fm(f"v_lshlrev_b32 v{vQ}, 4, v{vQ}"); Fm(f"v_add_u32 v{vQ}, {L_Q}, v{vQ}")
    Fm(f"v_lshrrev_b32 v{OA+1}, 2, v17")
    Fm(f"v_mul_u32_u24 v{OA+2}, 2080, v16"); Fm(f"v_lshl_add_u32 v{OA+2}, v{OA+1}, 8, v{OA+2}"); Fm(f"v_lshl_add_u32 v{OA+2}, v{vN}, 3, v{OA+2}")
    Fm(f"v_add_u32 v{OA+2}, s79, v{OA+2}")
    for ch in range(4):
        Fm(f"v_xor_b32 v{OA+3}, {ch}, v{OA+1}"); Fm(f"v_lshl_add_u32 v{TRA+ch}, v{OA+3}, 6, v{OA+2}")
    Fm("s_lshl_b32 s43, s39, 9"); Fm(f"v_add_u32 v{vY}, s43, v{vV}")
    Fm(f"v_lshrrev_b32 v{OA+3}, 5, v0"); Fm(f"v_lshl_add_u32 v{vY}, v{OA+3}, 30, v{vY}")
    P_("s_lshl2_add_u32 s81, s34, s37"); P_("s_lshl_b32 s81, s81, 11"); P_("s_lshl_b32 s43, s36, 18"); P_("s_add_u32 s81, s81, s43"); P_(f"s_add_u32 s81, s81, {WS_Y}")
    Fm("s_movk_i32 s70, 0x800"); Fm("s_mov_b32 s71, 0x20000")
    Fm(f"s_movk_i32 s82, {(1<<TB)-1:#x}")
    if CMAP == 0:
        Fm("s_lshr_b32 s88, s32, 1"); Fm("s_lshl_b32 s88, s88, 4"); Fm("s_lshr_b32 s43, s33, 1"); Fm("s_add_u32 s88, s88, s43")
        Fm("s_or_b32 s89, s32, s33"); Fm("s_and_b32 s89, s89, 1")
    elif CMAP == 1:
        Fm("s_lshl_b32 s88, s32, 3"); Fm("s_lshr_b32 s43, s33, 2"); Fm("s_add_u32 s88, s88, s43"); Fm("s_and_b32 s89, s33, 3")
    elif CMAP == 2:
        Fm("s_lshr_b32 s88, s32, 2"); Fm("s_lshl_b32 s88, s88, 5"); Fm("s_add_u32 s88, s88, s33"); Fm("s_and_b32 s89, s32, 3")
    Fm("s_lshl2_add_u32 s88, s88, s39")
    Fm("s_lshr_b32 s78, s88, 7"); Fm("s_lshl_b32 s78, s78, 18"); Fm("s_and_b32 s43, s88, 127"); Fm("s_lshl4_add_u32 s78, s43, s78"); Fm(f"s_add_u32 s78, s78, {WS_Y}")
    Fm(f"v_lshlrev_b32 v{vG}, 11, v0"); Fm(f"v_add_u32 v{vG}, s78, v{vG}")
    Fm("s_lshr_b32 s78, s88, 4"); Fm("s_lshl_b32 s78, s78, 7"); Fm("s_and_b32 s43, s88, 15"); Fm("s_lshl1_add_u32 s78, s43, s78")
    Fm(f"v_lshlrev_b32 v{vO}, 5, v16"); Fm(f"v_lshl_add_u32 v{vO}, v17, 20, v{vO}"); Fm(f"v_add_u32 v{vO}, s78, v{vO}")
    Fm("s_movk_i32 s94, 0x800"); Fm("s_mov_b32 s95, 0x20000"); Fm(f"s_mov_b32 s90, {spin}")
    Fm(f"s_lshl2_add_u32 s64, s39, {L_M}")
    Fm(f"s_mov_b32 s65, {f2u(0.08838834764831845):#x}"); Fm(f"s_mov_b32 s66, {f2u(1.4426950408889634):#x}")
    Fm("s_mov_b32 s67, 0xffff0000"); Fm(f"v_mov_b32 v{vM}, {L_M}")
    for k in range(16): Fm(f"v_mov_b32 v{Q+k}, 0")
    for k in range(4): Fm(f"v_mov_b32 v{T+k}, 0")
    for k in range(4): Fm(f"v_mov_b32 v{O+k}, 0")
    L.extend(pre)
    late_fill = []
    if BAR0 is None:
        A("s_waitcnt lgkmcnt(0)")
        if WSB: A(f"s_add_u32 s30, s30, {WSB}"); A("s_addc_u32 s31, s31, 0")
        stamp(0)
        L.extend(srds); L.extend(post)
    else:
        A("s_waitcnt lgkmcnt(0)")
        if WSB: A(f"s_add_u32 s30, s30, {WSB}"); A("s_addc_u32 s31, s31, 0")
        stamp(0)
        L.extend(srds); A("s_barrier")
        late_fill = post
    NLO = 16 + NF
    if WBI is None: WBI = NLO
    K0L = 1024 * NLO + 32 * (NLO >> 1) - 1024 * NF
    assert K0L + 16 * 1024 <= WO_SLICE
    vm = {"n": 0, "idx": {}, "done": -1}
    freed = set()
    def emit_issue(op):
        oid, lines, req = op
        assert req is None or req in freed, (oid, req)
        if CAP and vm.get("cap") and vm["n"] < CAPEND and vm["done"] < vm["n"] - 1 - CAP:
            A(f"s_waitcnt vmcnt({CAP})"); vm["done"] = vm["n"] - 1 - CAP
        L.extend(lines); vm["idx"][oid] = vm["n"]; vm["n"] += 1
    def emit_need(oid):
        i = vm["idx"][oid]
        if i > vm["done"]:
            A(f"s_waitcnt vmcnt({min(63, vm['n'] - 1 - i)})"); vm["done"] = i
        else:
            A("s_nop 0")
    def cost(t):
        if t.startswith("v_mfma"): return 16
        if t.startswith("v_exp") or t.startswith("v_rcp"): return 8
        if t.startswith("s_nop"): return 4 * (int(t.split()[1]) + 1) if False else 4
        if t.startswith("s_waitcnt lgkm"): return 30
        return 4
    def phase(comp, iss, lead=0.0):
        tot = sum(sum(cost(t) for t in c[1]) if c[0] == "g" else 4 for c in comp)
        acc = 0; k = 0
        for c in comp:
            while k < len(iss) and (k + lead) * tot <= acc * len(iss) and (iss[k][2] is None or iss[k][2] in freed):
                emit_issue(iss[k]); k += 1
            if c[0] == "g": L.extend(c[1]); acc += sum(cost(t) for t in c[1])
            elif c[0] == "need": emit_need(c[1]); acc += 4
            elif c[0] == "free": freed.add(c[1])
        while k < len(iss): emit_issue(iss[k]); k += 1
    def G(*t): return ("g", list(t))
    def mix(a, b):
        out = []; na, nb = len(a), len(b); ia = ib = 0
        while ia < na or ib < nb:
            if ib < nb and (ia >= na or (2 * ib + 1) * na <= 2 * ia * nb): out.append(b[ib]); ib += 1
            else: out.append(a[ia]); ia += 1
        return out
    adv = ["s_add_u32 s75, s75, s72", "s_and_b32 s75, s75, s73"]
    def ld_tile(name, st, srd, vo, prev):
        return [(f"{name}.{k}", [f"buffer_load_dwordx4 v[{st+4*k}:{st+4*k+3}], v{vo}, s[{srd}:{srd+3}], s75 offen nt"] + adv,
                 None if prev is None else f"{prev}.{k}") for k in range(16)]
    def ld_wo(name, srd, lo, hi, req=None):
        return [(f"{name}.{u}", [f"s_add_u32 m0, s79, {1024*u + 32*(u>>1)}", f"s_mov_b32 s78, {4096*u}",
                                 f"buffer_load_dwordx4 v{vW}, s[{srd}:{srd+3}], s78 offen nt lds"], req) for u in range(lo, hi)]
    advB = ["s_add_u32 s74, s74, s72", "s_and_b32 s74, s74, s83"]
    KB = [(f"KB.{k}", [f"buffer_load_dwordx4 v[{X+4*k}:{X+4*k+3}], v{vK}, s[52:55], s74 offen nt"] + advB, None) for k in range(16)]
    VB = [(f"VB.{k}", [f"buffer_load_dwordx4 v[{Y+4*k}:{Y+4*k+3}], v{vV}, s[56:59], s74 offen nt"] + advB, None) for k in range(16)]
    K0 = [(f"K0.{k}", [f"s_add_u32 m0, s77, {1024*k}" if k < NF else f"s_add_u32 m0, s79, {K0L + 1024*k}", "s_nop 0", f"buffer_load_dwordx4 v{vK}, s[44:47], s75 offen nt lds"] + adv, None) for k in range(16)]
    stamp(13)
    C("first loads: K_B, V_B into registers, first K_A tile into LDS, half of wo_B into LDS")
    for n, op in enumerate(mix(KB + K0 + VB if K0MID else KB + VB + K0, ld_wo("WB", 60, 0, WBI))):
        if n == PACE + 1: L.extend(late_fill)
        if n > PACE: A(f"s_waitcnt vmcnt({PACE})")
        emit_issue(op)
    stamp(1)
    vm["cap"] = True
    A("s_barrier")
    stamp(2)

    def extract(u, dst):
        d = DK[u & 1]
        return [G(f"v_mov_b32_dpp v{dst+u}, v{d} quad_perm:[0,0,0,0] row_mask:0xf bank_mask:0xf")] + \
               [G(f"v_add_f32_dpp v{dst+u}, v{d+r}, v{dst+u} quad_perm:[{r},{r},{r},{r}] row_mask:0xf bank_mask:0xf") for r in range(1, 4)]
    def load_q(br):
        c = [G(f"ds_read_b128 v[{OA}:{OA+3}], v{vQ} offset:{br*256}"), G("s_waitcnt lgkmcnt(0)")]
        for j in range(4):
            for k in range(4):
                c.append(G(f"v_mov_b32_dpp v{Q+4*j+k}, v{OA+k} quad_perm:[0,1,2,3] row_mask:0xf bank_mask:{1<<j:#x}"))
        return c
    def ktile(name, st, dst):
        c = []
        for u in range(4):
            d = DK[u & 1]
            for t in range(4):
                k = 4 * u + t
                cc = "0" if t == 0 else f"v[{d}:{d+3}]"
                c.append(("need", f"{name}.{k}"))
                c.append(G(f"v_mfma_f32_16x16x32_bf16 v[{d}:{d+3}], v[{st+4*k}:{st+4*k+3}], v[{Q+4*t}:{Q+4*t+3}], {cc}"))
                c.append(("free", f"{name}.{k}"))
            if u > 0: c += extract(u - 1, dst)
        c.append(G("s_nop 3"))
        return c + extract(3, dst)
    def vtile(name, st, p, extra=None):
        c = []
        for k in range(16):
            u, t = k >> 2, k & 3
            a = AOP[k & 1]
            for j in range(4):
                c.append(G(f"v_and_b32_dpp v{a+j}, v{p+u}, v{MASK+j} row_newbcast:{4*t} row_mask:0xf bank_mask:0xf"))
            c.append(G(*(extra[k] if extra and extra[k] else ["s_nop 0"])))
            c.append(("need", f"{name}.{k}"))
            c.append(G(f"v_mfma_f32_16x16x32_bf16 v[{O}:{O+3}], v[{a}:{a+3}], v[{st+4*k}:{st+4*k+3}], v[{O}:{O+3}]"))
            c.append(("free", f"{name}.{k}"))
        return c
    def wred(op, r):
        return [G("s_nop 1", f"{op}_dpp v{r}, v{r}, v{r} {ctl} bank_mask:0xf") for ctl in
                ("row_ror:4 row_mask:0xf", "row_ror:8 row_mask:0xf", "row_bcast:15 row_mask:0xa", "row_bcast:31 row_mask:0xc")]
    def softmax(n, mslot):
        t0 = OA; c = []
        for rnd in range(2):
            for k in range(0, n, 2): c.append(G(f"v_cvt_pk_bf16_f32 v{t0+k//2}, v{S+k}, v{S+k+1}"))
            for k in range(0, n, 2): c.append(G(f"v_lshlrev_b32 v{S+k}, 16, v{t0+k//2}", f"v_and_b32 v{S+k+1}, s67, v{t0+k//2}"))
            if rnd == 0:
                for k in range(n): c.append(G(f"v_mul_f32 v{S+k}, s65, v{S+k}"))
        c.append(G(f"v_max3_f32 v{t0}, v{S}, v{S+1}, v{S+2}"))
        for k in range(3, n - 1, 2): c.append(G(f"v_max3_f32 v{t0}, v{t0}, v{S+k}, v{S+k+1}"))
        c.append(G(f"v_max_f32 v{t0}, v{t0}, v{S+n-1}"))
        c += wred("v_max_f32", t0)
        c.append(G("s_nop 1", f"v_readlane_b32 s80, v{t0}, 63", f"v_mov_b32 v{t0+2}, s66", "s_nop 1", f"v_mul_f32 v{t0+2}, s80, v{t0+2}"))
        for k in range(n): c.append(G(f"v_fma_f32 v{S+k}, v{S+k}, s66, -v{t0+2}"))
        for k in range(n): c.append(G(f"v_exp_f32 v{S+k}, v{S+k}"))
        c.append(G(f"v_add_f32 v{t0+3}, v{S}, v{S+1}"))
        for k in range(2, n): c.append(G(f"v_add_f32 v{t0+3}, v{t0+3}, v{S+k}"))
        for k in range(n): c.append(G(f"v_cvt_pk_bf16_f32 v{S+k}, v{S+k}, v{S+k}"))
        c += wred("v_add_f32", t0 + 3)
        c.append(G(f"v_mov_b32 v{t0}, s64", "s_mov_b32 exec_lo, 0", "s_mov_b32 exec_hi, 0x80000000",
                   f"ds_write2_b32 v{t0}, v{t0+2}, v{t0+3} offset0:{mslot//4} offset1:{mslot//4+4}", "s_mov_b64 exec, -1"))
        return c
    def kl(dst):
        c = [G(f"v_add_u32 v{OA}, s79, v{vV}")] + ([G(f"v_add_u32 v{OA+1}, s77, v{vV}")] if NF else []) + [("need", "K0.15")]
        rd = lambda k: G(f"ds_read_b128 v[{BT+4*(k%NBT)}:{BT+4*(k%NBT)+3}], v{OA+1} offset:{k*1024}" if k < NF else
                         f"ds_read_b128 v[{BT+4*(k%NBT)}:{BT+4*(k%NBT)+3}], v{OA} offset:{K0L + k*1024}")
        for k in range(NBT - 1): c.append(rd(k))
        for k in range(16):
            u, t = k >> 2, k & 3
            d = DK[u & 1]; bt = BT + 4 * (k % NBT)
            cc = "0" if t == 0 else f"v[{d}:{d+3}]"
            c.append(G(f"s_waitcnt lgkmcnt({min(16, k + NBT - 1) - k - 1})",
                       f"v_mfma_f32_16x16x32_bf16 v[{d}:{d+3}], v[{bt}:{bt+3}], v[{Q+4*t}:{Q+4*t+3}], {cc}"))
            if k + NBT - 1 < 16: c.append(rd(k + NBT - 1))
            if t == 3 and u > 0: c += extract(u - 1, dst)
        c.append(("free", "K0L"))
        c.append(G("s_nop 3"))
        return c + extract(3, dst)
    def owrite(br):
        return [G("s_nop 7"), G(f"v_cvt_pk_bf16_f32 v{OA}, v{O}, v{O+1}", f"v_cvt_pk_bf16_f32 v{OA+1}, v{O+2}, v{O+3}"),
                G(f"ds_write_b64 v{vOW}, v[{OA}:{OA+1}] offset:{br*4*O_ROW}"), G("s_waitcnt lgkmcnt(0)")]
    steps = [(cg, kb) for cg in range(8) for kb in range(4)]
    def trread(n, bt):
        cg, kb = steps[n]
        return [f"ds_read_b64_tr_b16 v[{bt+2*rd}:{bt+2*rd+1}], v{TRA + (cg>>1)} offset:{kb*8320 + rd*1024 + (cg&1)*32}" for rd in range(2)]
    def fin(cg):
        d = DK[cg & 1]
        return [G(f"v_fmac_f32_dpp v{T+(cg&3)}, v{d+r}, v{F+r} quad_perm:[0,1,2,3] row_mask:{1<<(cg>>2):#x} bank_mask:0xf") for r in range(4)]
    GG = AOP[0]
    def fprep(n, br):
        if n == 0: return [G(f"v_max3_f32 v{GG+3}, v{F}, v{F+1}, v{F+2}", f"v_max_f32 v{GG+3}, v{GG+3}, v{F+3}")] + [G(f"v_sub_f32 v{F+r}, v{F+r}, v{GG+3}") for r in range(4)]
        if n == 1: return [G(f"v_exp_f32 v{F+r}, v{F+r}") for r in range(4)]
        if n == 2 and br == 0: return [G(f"v_mul_f32 v{T+r}, v{T+r}, v{GG+1}") for r in range(4)]
        if n == 3 and br == 0: return [G(f"v_mul_f32 v{F+r}, v{F+r}, v{GG}") for r in range(4)]
        return []
    def out_b():
        c = [G(f"ds_read_b128 v[{OA+4*kb}:{OA+4*kb+3}], v{vOR} offset:{4*O_ROW + kb*64}") for kb in range(4)]
        c.append(G(f"ds_read_b128 v[{F}:{F+3}], v{vM} offset:64"))
        nread = 5
        for n in range(nread): c.append(G(*trread(n, BT + 4 * (n % NBT))))
        for n, (cg, kb) in enumerate(steps):
            d = DK[cg & 1]; bt = BT + 4 * (n % NBT)
            cc = "0" if kb == 0 else f"v[{d}:{d+3}]"
            c.append(G(f"s_waitcnt lgkmcnt({2*(nread - n - 1)})",
                       f"v_mfma_f32_16x16x32_bf16 v[{d}:{d+3}], v[{OA+4*kb}:{OA+4*kb+3}], v[{bt}:{bt+3}], {cc}"))
            while nread < 32 and nread - n - 1 < NBT - 1 and 2 * (nread - n) <= 14:
                c.append(G(*trread(nread, BT + 4 * (nread % NBT)))); nread += 1
            c += fprep(n, 1)
            if kb == 3 and cg > 0: c += fin(cg - 1)
        c.append(("free", "WO"))
        c.append(G("s_nop 3"))
        return c + fin(7)

    K1 = ld_tile("K1", X, 44, vK, "KB"); K2 = ld_tile("K2", Y, 44, vK, "VB"); K3 = ld_tile("K3", X, 44, vK, "K1")
    V0 = ld_tile("V0", Y, 48, vV, "K2"); V1 = ld_tile("V1", X, 48, vV, "K3"); V2 = ld_tile("V2", Y, 48, vV, "V0"); V3 = ld_tile("V3", X, 48, vV, "V1")
    WBu = ld_wo("WB", 60, WBI, NLO) + ld_wo("WB", 60, NLO, 32, "K0L"); WA = ld_wo("WA", 84, 0, 32, "WO")
    D3 = DEFER
    if P1A is None:
        phase(load_q(1) + ktile("KB", X, S) + softmax(4, 64) + load_q(0) + kl(S + 4), K1)
        stamp(3)
        phase(vtile("VB", Y, S) + owrite(1), mix(K2, WBu), lead=-1)
        stamp(4)
        phase(ktile("K1", X, S), K3[:16 - D3], lead=-1)
    else:
        phase(load_q(1) + ktile("KB", X, S) + softmax(4, 64), K1[:P1A])
        rest = mix(K1[P1A:] + K2 + K3[:WBX], WBu)
        n1 = max(i for i, op in enumerate(rest) if op[0].startswith("K1.")) + 1
        n2 = max(i for i, op in enumerate(rest) if op[0].startswith("K2.")) + 1
        nfree = min([i for i, op in enumerate(rest) if op[2] == "K0L"] + [n1])
        phase(load_q(0) + kl(S + 4), rest[:nfree])
        stamp(3)
        phase(vtile("VB", Y, S) + owrite(1), rest[nfree:n2], lead=-1)
        stamp(4)
        phase(ktile("K1", X, S), rest[n2:] + K3[WBX:16 - D3], lead=-1)
    emit_need("WB.31")
    stamp(5)
    A("s_barrier")
    stamp(6)
    phase(out_b(), K3[16 - D3:])
    stamp(7)
    w0, w1, w2 = WSPLIT
    phase(ktile("K2", Y, S + 8), mix(V0, WA[:w0]), lead=-1)
    phase(ktile("K3", X, S + 12) + softmax(16, 0) + [G(f"v_mov_b32 v{O+k}, 0") for k in range(4)], mix(V1, WA[w0:w1]))
    stamp(8)
    sig = [G(f"v_mov_b32 v{OA}, {L_P}", f"ds_write_b32 v{OA}, v{OA}")]
    phase(vtile("V0", Y, S + 4) + sig, mix(V2, WA[w1:w2]), lead=-1)
    phase(vtile("V1", X, S), mix(V3[:10], WA[w2:]) + V3[10:], lead=-1)
    phase(vtile("V2", Y, S + 8), [])
    dst = [BT + 4 * n for n in range(NBT)] + [Y + 4 * n for n in range(16)] + [X + 4 * n for n in range(32 - 16 - NBT)]
    TG = Q + 4
    A(f"ds_read_b128 v[{TG}:{TG+3}], v{vM} offset:{L_T-L_M}")
    A(f"ds_read_b64 v[{Q+2}:{Q+3}], v{vM} offset:{L_T-L_M+16}")
    A(f"v_add_u32 v{Q}, 0x20000, v{vG}")
    A("s_mov_b64 s[4:5], -1"); A("s_mov_b64 s[6:7], -1"); A("s_mov_b64 s[22:23], 1")
    A(f"s_add_u32 s24, s30, {WS_E}"); A("s_addc_u32 s25, s31, 0"); A("s_cmp_eq_u32 s88, 0"); A("s_cselect_b32 s26, 8, 0"); A("s_mov_b32 s27, 0x20000")
    A("s_waitcnt lgkmcnt(0)")
    for t in range(2): A(f"v_not_b32 v{Q+8+4*t}, v{TG}")
    emit_need("WA.31")
    extra = [[] for _ in range(16)]
    nx = 0
    for k in range(16):
        lim = NBT + 16 + max(0, k - 1)
        cnt = 0
        while nx < 32 and nx < lim and cnt < 3:
            extra[k] += trread(nx, dst[nx]); nx += 1; cnt += 1
    assert nx == 32
    phase(vtile("V3", X, S + 12, extra), [])
    stamp(9)
    phase(owrite(0), [])
    A("s_barrier")
    stamp(10)
    C("output projection of branch A, mix, publish")
    c = [G(f"ds_read_b128 v[{OA+4*kb}:{OA+4*kb+3}], v{vOR} offset:{kb*64}") for kb in range(4)]
    c.append(G(f"ds_read_b128 v[{F}:{F+3}], v{vM} offset:48", f"ds_read_b32 v{GG}, v{vM} offset:36"))
    AC3 = [DK[0], DK[1], O]
    def fin1(cg, r): return f"v_fmac_f32_dpp v{T+(cg&3)}, v{AC3[cg % 3]+r}, v{F+r} quad_perm:[0,1,2,3] row_mask:{1<<(cg>>2):#x} bank_mask:0xf"
    for n, (cg, kb) in enumerate(steps):
        d = AC3[cg % 3]
        cc = "0" if kb == 0 else f"v[{d}:{d+3}]"
        if n < 5: c.append(G(f"s_waitcnt lgkmcnt({[5, 4, 3, 2, 0][n]})"))
        c.append(G(f"v_mfma_f32_16x16x32_bf16 v[{d}:{d+3}], v[{OA+4*kb}:{OA+4*kb+3}], v[{dst[n]}:{dst[n]+3}], {cc}"))
        if cg == 1: c.append(G(f"v_mul_f32 v{T+kb}, v{T+kb}, v{GG}"))
        if cg >= 2: c.append(G(fin1(cg - 2, kb)))
    c += [G(fin1(6, r)) for r in range(4)]
    c += [G(f"v_bfi_b32 v{OA+k}, s82, v{TG+k}, v{T+k}") for k in range(3)]
    c += [G(fin1(7, r)) for r in range(4)]
    c.append(G(f"v_bfi_b32 v{OA+3}, s82, v{TG+3}, v{T+3}"))
    if "noy" not in abl: c.append(G(f"buffer_store_dwordx4 v[{OA}:{OA+3}], v{vY}, s[68:71], 0 offen sc1"))
    phase(c, [])
    stamp(11)
    if comm_off != 4:
        C("final sum over the 128 producers of a batch: four output columns per wave")
        A("s_cmp_lg_u32 s89, 0"); A("s_cbranch_scc1 L_wend")
        YD = Q + 8
        if SAMP:
            C("first watch a sample of the producers, so that most lines are read once, after they were written")
            A(f"s_mov_b32 s4, {SAMP:#x}"); A("s_mov_b32 s5, s4"); A("s_mov_b64 s[6:7], s[4:5]"); A("s_mov_b64 s[8:9], s[4:5]")
        A("L_wpoll:")
        for t in range(2):
            A(f"s_mov_b64 exec, s[{4+2*t}:{5+2*t}]")
            A(f"global_load_dwordx4 v[{YD+4*t}:{YD+4*t+3}], v{vG if t == 0 else Q}, s[30:31] sc1")
        A("s_mov_b64 exec, -1")
        A("s_waitcnt vmcnt(0)")
        for t in range(2):
            d = Y + 4 * t
            for k in range(4): A(f"v_xor_b32 v{d+k}, v{TG+k}, v{YD+4*t+k}")
            A(f"v_or3_b32 v{S}, v{d}, v{d+1}, v{d+2}"); A(f"v_or_b32 v{S}, v{S}, v{d+3}"); A(f"v_and_b32 v{S}, s82, v{S}")
            A(f"v_cmp_ne_u32 s[{4+2*t}:{5+2*t}], 0, v{S}")
        A(f"v_pk_add_f32 v[{Y}:{Y+1}], v[{Y}:{Y+1}], v[{Y+4}:{Y+5}]"); A(f"v_pk_add_f32 v[{Y+2}:{Y+3}], v[{Y+2}:{Y+3}], v[{Y+6}:{Y+7}]")
        A("s_or_b64 s[20:21], s[4:5], s[6:7]")
        A("s_cbranch_scc0 L_wok")
        if SAMP:
            A("s_and_b64 s[20:21], s[20:21], s[8:9]"); A("s_cselect_b64 s[8:9], s[8:9], -1")
            A("s_and_b64 s[4:5], s[4:5], s[8:9]"); A("s_and_b64 s[6:7], s[6:7], s[8:9]")
        A("s_sub_u32 s90, s90, 1"); A("s_cbranch_scc0 L_wpoll")
        A("L_wok:")
        C("every workgroup has read the epoch by now: one lane advances it")
        A("s_mov_b64 exec, s[22:23]")
        if "noe" not in abl: A(f"buffer_store_dwordx2 v[{Q+2}:{Q+3}], off, s[24:27], 0")
        A("s_mov_b64 exec, -1")
        A(f"v_permlane32_swap_b32 v{Y}, v{Y+2}"); A(f"v_permlane32_swap_b32 v{Y+1}, v{Y+3}")
        A(f"v_add_f32 v{Y}, v{Y}, v{Y+2}"); A(f"v_add_f32 v{Y+1}, v{Y+1}, v{Y+3}"); A("s_nop 1")
        A(f"v_permlane16_swap_b32 v{Y}, v{Y+1}")
        A(f"v_add_f32 v{Y}, v{Y}, v{Y+1}")
        for r in (1, 2, 4, 8):
            A("s_nop 1"); A(f"v_add_f32_dpp v{Y}, v{Y}, v{Y} row_ror:{r} row_mask:0xf bank_mask:0xf")
        A(f"v_cvt_pk_bf16_f32 v{Y}, v{Y}, v{Y}")
        if "noout" not in abl: A(f"buffer_store_short v{Y}, v{vO}, s[92:95], 0 offen {OST}")
        stamp(12)
        if amp:
            A("s_cmp_lg_u32 s88, 0"); A("s_cbranch_scc1 L_wend")
            if amp[0] < 0: A(f"s_mov_b32 s96, {amp[1]}")
            else: A("s_sub_u32 s96, s96, s98"); A(f"s_mul_i32 s96, s96, {amp[1]}")
            A("s_min_u32 s10, s96, 100000")
            A("s_memrealtime s[96:97]"); A("s_waitcnt lgkmcnt(0)"); A("s_mov_b32 s11, s96")
            A("L_amp:"); A("s_memrealtime s[96:97]"); A("s_waitcnt lgkmcnt(0)"); A("s_sub_u32 s96, s96, s11"); A("s_cmp_lt_u32 s96, s10"); A("s_cbranch_scc1 L_amp")
        A("L_wend:")
    stamp_flush()
    A("s_endpgm")
    A("L_codeend:")
    A('.section .rodata,"a"'); A(".p2align 6"); A(f".amdhsa_kernel {KN}")
    A("  .amdhsa_next_free_vgpr 256"); A("  .amdhsa_next_free_sgpr 100"); A("  .amdhsa_accum_offset 256")
    A("  .amdhsa_group_segment_fixed_size 0"); A("  .amdhsa_kernarg_size 112"); A("  .amdhsa_user_sgpr_count 2")
    A("  .amdhsa_user_sgpr_kernarg_segment_ptr 1"); A("  .amdhsa_system_sgpr_workgroup_id_x 1")
    A("  .amdhsa_float_denorm_mode_32 3")
    A(".end_amdhsa_kernel")
    open(path, "w").write("\n".join(L) + "\n")

if __name__ == "__main__":
    gen(sys.argv[1], stamps=(len(sys.argv) > 2 and sys.argv[2] == "st"))
```

```python
import sys, struct
KN = "gated_mix__gqa_block_cached__sliding_block_cached__decode_kernel"
def f2u(x): return struct.unpack("<I", struct.pack("<f", x))[0]

WS_QP = 0x0
WS_ML = 0x80000
WS_E  = 0x98000
WS_Y  = 0x100000
WS_ST = 0x200000
TB = 10
WO_SLICE = 33280
L_O = 4 * WO_SLICE
O_ROW = 576
L_Q = L_O + 8 * O_ROW
L_M = L_Q + 512
L_P = L_M + 128
L_T = L_P + 16
LDS_BYTES = L_T + 32

HEAD = """; gated mix of two cached-attention decode blocks, one fused launch (generated by the author's own script).
;   wave 0     : 1/8 of the head's q projection (shared through d_ws), gate, softmax statistics exchange
;   waves 1..4 : stream K then V (nt loads), scores/softmax/PV on MFMA, output projection from LDS,
"""

def gen(path, stamps=False, PACE=10, spin=400000, comm_off=0, WSB=0, ROT=13, DEFER=6, WSPLIT=(11, 22, 32), cpf=True,
        qretry=4, lsleep=8, mlsleep=10, BAR0=None, qsleep=0, gate_first=True, CMAP=0, HX=0, XF='', NF=6, P1A=None, WBI=19, WBX=0, K0MID=False, CAP=None, CAPEND=999, RB=('wg', 37), RA=('wg', 0), abl=(), QF='sc1', OST='', SAMP=0x00010001, amp=None, WOF='', WQF='nt', ampc=None, XAT=8, HELP=0, HF='', HD=1, HN=1, CH=0, CT=(8,), CSIG=16, YPRE=None, OPRE=False, OP2=0):
    L = []
    A = L.append
    role = ["comm"]
    def stamp(k):
        if ampc and role[0] == "comm" and ampc[0] == k:
            A("s_memrealtime s[96:97]")
        if amp and role[0] == "comp" and amp[0] == k:
            A("s_memrealtime s[96:97]"); A("s_waitcnt lgkmcnt(0)")
        if stamps:
            A("s_memrealtime s[96:97]"); A("s_waitcnt lgkmcnt(0)"); A(f"v_writelane_b32 v19, s96, {k}")
    def stamp_flush():
        if stamps:
            A("s_lshl_b32 s96, s2, 3"); A("s_add_u32 s96, s96, s38"); A("s_lshl_b32 s96, s96, 8"); A(f"s_add_u32 s96, s96, {WS_ST}")
            A("s_getreg_b32 s97, hwreg(HW_REG_XCC_ID)"); A("v_writelane_b32 v19, s97, 63")
            A("v_lshlrev_b32 v18, 2, v0"); A("v_add_u32 v18, s96, v18")
            A("global_store_dword v18, v19, s[30:31]")
    def C(t): A("; " + t)

    L.extend(HEAD.rstrip().split("\n"))
    L_F0 = (LDS_BYTES + 15) // 16 * 16
    A(f"; @launch grid=(256,1,1) block=(320,1,1) lds={L_F0 + 4096 * NF + (4096 if HELP else 0)}")
    A('.amdgcn_target "amdgcn-amd-amdhsa--gfx950"')
    A(".text"); A(f".globl {KN}"); A(".p2align 8"); A(f".type {KN},@function"); A(f"{KN}:")
    A("s_cmp_ge_u32 s2, 256"); A("s_cbranch_scc1 L_end")
    if amp or ampc: A("s_memrealtime s[98:99]")
    A("s_load_dwordx16 s[4:19], s[0:1], 0")
    A("s_load_dwordx8 s[20:27], s[0:1], 64")
    A("s_load_dwordx4 s[28:31], s[0:1], 96")
    A("v_lshrrev_b32 v1, 6, v0")
    A("s_and_b32 s32, s2, 7"); A("s_lshr_b32 s33, s2, 3")
    A("v_readfirstlane_b32 s38, v1")
    A("v_and_b32 v0, 63, v0")
    A("s_lshr_b32 s34, s33, 3"); A("s_lshl2_add_u32 s34, s32, s34          ; h")
    if HX: A(f"s_xor_b32 s34, s34, {HX}")
    A("s_and_b32 s35, s33, 7")
    A("s_lshr_b32 s36, s35, 2                  ; b")
    A("s_and_b32 s37, s35, 3                   ; s")
    A("v_lshrrev_b32 v16, 4, v0")
    A("v_and_b32 v17, 15, v0")
    if stamps: A("v_mov_b32 v19, 0")
    A("s_cmp_lg_u32 s38, 0"); A("s_cbranch_scc1 L_comp")

    C("================ wave 0 ================")
    if cpf:
        C("pull one KiB of this kernel's code towards the L2 so that later instruction fetches hit there")
        A("s_getpc_b64 s[40:41]"); A("L_pf:")
        A("s_lshl_b32 s42, s33, 10"); A("s_min_u32 s42, s42, L_codeend-L_pf-1024"); A("s_and_b32 s42, s42, -16"); A("s_and_b32 s40, s40, -16")
        A("v_lshl_add_u32 v1, v0, 4, s42")
        A("global_load_dwordx4 v[48:51], v1, s[40:41]")
    A("s_setprio 3")
    WQ, AOPS, XV, SEL, DQ = 128, 64, 20, 36, 52
    C("rows [128*rb, 128*rb+128) of wq_br (br = jj&1, rb = jj>>1), this head's 128 columns, both batches")
    A("s_and_b32 s53, s35, 1"); A("s_lshr_b32 s43, s35, 1")
    A("v_lshlrev_b32 v1, 18, v16"); A("v_lshl_add_u32 v1, v17, 4, v1")
    A("v_lshrrev_b32 v2, 3, v17"); A("v_lshlrev_b32 v2, 10, v2"); A("v_lshl_add_u32 v2, v16, 6, v2")
    A("s_lshl_b32 s40, s43, 8"); A("v_add_u32 v2, s40, v2")
    A("s_lshl_b32 s40, s43, 20"); A("s_lshl_b32 s41, s34, 8"); A("s_add_u32 s40, s40, s41")
    A("s_mov_b32 s46, 0x100000"); A("s_mov_b32 s47, 0x20000")
    A("s_mov_b32 s72, 0"); A("s_movk_i32 s73, 0x2000")
    A("s_cmp_eq_u32 s53, 0")
    A("s_waitcnt lgkmcnt(0)")
    A("s_cselect_b32 s44, s10, s20"); A("s_cselect_b32 s45, s11, s21")
    if WSB: A(f"s_add_u32 s30, s30, {WSB}"); A("s_addc_u32 s31, s31, 0")
    stamp(0)
    A("s_add_u32 s44, s44, s40"); A("s_addc_u32 s45, s45, 0")
    for t in range(32):
        if t == XAT:
            for k in range(4): A(f"global_load_dwordx4 v[{XV+4*k}:{XV+4*k+3}], v2, s[4:5] offset:{16*k} {XF}")
            A(f"s_load_dwordx2 s[92:93], s[30:31], {WS_E}")
        A(f"buffer_load_dwordx4 v[{WQ+4*t}:{WQ+4*t+3}], v1, s[44:47], s72 offen {WQF}")
        if t < 31: A("s_add_u32 s72, s72, s73")
        if BAR0 is not None and t == BAR0: A("s_barrier")
        if ampc and t == 0: stamp(13)
        if ampc and t == 31: stamp(14)
    A("v_lshlrev_b32 v60, 4, v0")
    C("byte selectors that place x on the diagonal of the A operand")
    A("v_and_b32 v8, 1, v17"); A("v_lshlrev_b32 v8, 4, v8")
    A("v_bfe_u32 v9, v17, 1, 2")
    A("v_mov_b32 v15, 0x0c0c0c0c")
    for hs in range(2):
        src = 0x0100 if hs == 0 else 0x0302
        A(f"v_mov_b32 v10, {src ^ 0x0c0c:#x}"); A("v_lshlrev_b32 v10, v8, v10"); A("v_xor_b32 v10, v10, v15")
        for j in range(4):
            A(f"v_cmp_eq_u32 vcc, {j}, v9"); A("s_nop 1"); A(f"v_cndmask_b32 v{SEL+4*hs+j}, v15, v10, vcc")
    A("s_lshl_b32 s40, s34, 13"); A("s_lshl_b32 s41, s53, 12"); A("s_add_u32 s41, s40, s41"); A("s_lshl_b32 s42, s43, 10"); A("s_add_u32 s41, s41, s42")
    A("v_add_u32 v62, s41, v60")
    A("s_lshl_b32 s42, s36, 9"); A("s_add_u32 s40, s40, s42")
    A("v_lshrrev_b32 v5, 5, v0"); A("v_lshlrev_b32 v3, 12, v5"); A("v_and_b32 v4, 31, v0"); A("v_lshl_add_u32 v3, v4, 4, v3")
    A("v_add_u32 v3, s40, v3")
    A("v_lshlrev_b32 v5, 8, v5"); A("v_lshl_add_u32 v5, v17, 4, v5"); A("v_and_b32 v6, 1, v16"); A("v_lshl_add_u32 v5, v6, 3, v5")
    A(f"v_add_u32 v5, {L_Q}, v5")
    C("tag of this launch (differs from the epoch word, hence from every word an earlier launch tagged)")
    A("s_waitcnt lgkmcnt(0)")
    A("s_mul_i32 s92, s92, 0x9e3779b1"); A("s_add_u32 s92, s92, 0x7f4a7c15")
    A("s_mul_i32 s93, s93, 0x85ebca6d"); A("s_add_u32 s93, s93, 0x2545f491")
    A(f"s_bfe_u32 s84, s92, {(TB << 16) | 0:#x}"); A(f"s_bfe_u32 s85, s92, {(TB << 16) | 16:#x}")
    A(f"s_bfe_u32 s86, s93, {(TB << 16) | 0:#x}"); A(f"s_bfe_u32 s87, s93, {(TB << 16) | 16:#x}")
    A("v_mov_b32 v8, s92"); A("v_mov_b32 v9, s93"); A("v_and_b32 v10, 2, v0"); A("v_cmp_eq_u32 vcc, 0, v10"); A("v_and_b32 v10, 1, v0")
    A("s_and_b32 s41, s92, 1")
    A("v_cndmask_b32 v8, v9, v8, vcc"); A("v_lshlrev_b32 v10, 4, v10"); A("v_lshrrev_b32 v8, v10, v8")
    for k in range(4):
        A(f"v_bfe_u32 v{12+k}, v8, {4*k+1}, 3"); A(f"v_lshl_or_b32 v{12+k}, v{12+k}, 1, s41")
    A("v_lshlrev_b32 v6, 2, v0"); A(f"v_add_u32 v6, {L_M}, v6"); A("v_mov_b32 v7, 0")
    for k in range(4): A(f"v_writelane_b32 v7, s{84+k}, {36+k}")
    A("v_writelane_b32 v7, s92, 40"); A("v_writelane_b32 v7, s93, 41")
    A("s_mov_b32 exec_hi, 0x3ff")
    A("ds_write_b32 v6, v7")
    A("s_mov_b64 exec, -1")
    A(f"s_waitcnt vmcnt({32 - XAT})")
    if ampc: stamp(15)
    def perms(t):
        for j in range(4):
            A(f"v_perm_b32 v{AOPS+4*(t&15)+j}, v{XV+(t>>1)}, v{XV+(t>>1)}, v{SEL+4*(t&1)+j}")
    for t in range(16): perms(t)
    for t in range(32):
        A(f"s_waitcnt vmcnt({31 - t})")
        c = "0" if t == 0 else f"v[{DQ}:{DQ+3}]"
        A(f"v_mfma_f32_16x16x32_bf16 v[{DQ}:{DQ+3}], v[{AOPS+4*(t&15)}:{AOPS+4*(t&15)+3}], v[{WQ+4*t}:{WQ+4*t+3}], {c}")
        if t < 16: perms(t + 16)
    A("s_lshl_b32 s41, s36, 10"); A("v_add_u32 v7, s41, v60")
    A("s_nop 5")
    for k in range(4): A(f"v_bfi_b32 v{8+k}, 15, v{12+k}, v{DQ+k}")
    A(f"global_store_dwordx4 v62, v[8:11], s[30:31] {QF}")
    stamp(1)
    A("global_load_dwordx4 v[44:47], v7, s[4:5]"); A("global_load_dwordx4 v[48:51], v60, s[24:25]")
    def gate_and_setup():
        C("gate g = sigmoid(sum(x*gate_w)) with the reference's bf16 roundings")
        A("s_mov_b32 s67, 0xffff0000")
        for k in range(4):
            A(f"v_lshlrev_b32 v52, 16, v{44+k}"); A(f"v_and_b32 v53, s67, v{44+k}")
            A(f"v_lshlrev_b32 v54, 16, v{48+k}"); A(f"v_and_b32 v55, s67, v{48+k}")
            A("v_mul_f32 v52, v52, v54"); A("v_mul_f32 v53, v53, v55")
            A("v_cvt_pk_bf16_f32 v52, v52, v53")
            A("v_lshlrev_b32 v53, 16, v52"); A("v_and_b32 v52, s67, v52")
            if k == 0: A("v_add_f32 v56, v52, v53")
            else: A("v_add_f32 v56, v56, v52"); A("v_add_f32 v56, v56, v53")
        for ctl in ("row_ror:1 row_mask:0xf", "row_ror:2 row_mask:0xf", "row_ror:4 row_mask:0xf", "row_ror:8 row_mask:0xf", "row_bcast:15 row_mask:0xa", "row_bcast:31 row_mask:0xc"):
            A("s_nop 1"); A(f"v_add_f32_dpp v56, v56, v56 {ctl} bank_mask:0xf")
        A("v_cvt_pk_bf16_f32 v56, v56, v56"); A("v_and_b32 v56, s67, v56")
        A(f"v_mul_f32 v56, {f2u(-1.4426950408889634):#x}, v56"); A("v_exp_f32 v56, v56"); A("s_nop 0")
        A("v_add_f32 v56, 1.0, v56"); A("v_rcp_f32 v56, v56"); A("s_nop 0")
        A("v_cvt_pk_bf16_f32 v56, v56, v56"); A("v_and_b32 v56, s67, v56")
        A("v_sub_f32 v57, 1.0, v56"); A("v_cvt_pk_bf16_f32 v57, v57, v57"); A("v_and_b32 v57, s67, v57")
        A("s_nop 1"); A("v_readlane_b32 s54, v56, 63"); A("v_readlane_b32 s55, v57, 63")
        C("statistics lines of this (b,h): lane = 4*br + s'")
        A("s_lshl_b32 s52, s36, 5"); A("s_add_u32 s52, s52, s34"); A("s_lshl_b32 s52, s52, 9"); A(f"s_add_u32 s52, s52, {WS_ML}")
        A("v_and_b32 v27, 3, v0"); A("v_lshlrev_b32 v26, 7, v27"); A("v_bfe_u32 v25, v0, 2, 1"); A("v_lshl_add_u32 v26, v25, 4, v26"); A("v_add_u32 v26, s52, v26")
        A("v_lshlrev_b32 v27, 2, v27"); A("v_lshl_add_u32 v27, v25, 6, v27"); A(f"v_add_u32 v27, {L_M}, v27")
        A(f"v_mov_b32 v28, {L_M}"); A("v_lshl_add_u32 v29, v25, 2, v28")
        A("v_mov_b32 v30, s54"); A("v_mov_b32 v31, s55"); A("v_cmp_eq_u32 vcc, 1, v25"); A("s_nop 1"); A("v_cndmask_b32 v30, v30, v31, vcc")
        A("s_lshl_b32 s58, 0x11, s37"); A("s_mov_b32 s59, 0")
        A("v_mov_b32 v33, s92"); A("v_mov_b32 v35, s93")
    A("s_waitcnt vmcnt(0)")
    stamp(2)
    if gate_first: gate_and_setup()
    if qsleep: A(f"s_sleep {qsleep}")
    A(f"s_mov_b32 s90, {spin}")
    C("the four partial q rows of both branches: accepted when every word carries the tag in the same pass")
    A("L_qd:")
    for p in range(4): A(f"global_load_dwordx4 v[{64+4*p}:{64+4*p+3}], v3, s[30:31] offset:{p*1024} {QF}")
    A("s_waitcnt vmcnt(0)")
    for p in range(4):
        for k in range(4): A(f"v_xor_b32 v{64+4*p+k}, v{12+k}, v{64+4*p+k}")
    A("v_or3_b32 v8, v64, v65, v66")
    for k in range(67, 79, 2): A(f"v_or3_b32 v8, v8, v{k}, v{k+1}")
    A("v_or_b32 v8, v8, v79"); A("v_and_b32 v8, 15, v8")
    A("v_cmp_ne_u32 vcc, 0, v8"); A("s_nop 1")
    A("s_cmp_eq_u64 vcc, 0"); A("s_cbranch_scc1 L_qd_ok")
    A(f"s_sleep {qretry}")
    A("s_sub_u32 s90, s90, 1"); A("s_cbranch_scc0 L_qd")
    A("L_qd_ok:")
    if stamps: A("v_writelane_b32 v19, s90, 20")
    for k in range(0, 4, 2):
        A(f"v_pk_add_f32 v[{64+k}:{65+k}], v[{64+k}:{65+k}], v[{68+k}:{69+k}]"); A(f"v_pk_add_f32 v[{72+k}:{73+k}], v[{72+k}:{73+k}], v[{76+k}:{77+k}]")
    for k in range(0, 4, 2):
        A(f"v_pk_add_f32 v[{8+k}:{9+k}], v[{64+k}:{65+k}], v[{72+k}:{73+k}]")
    A("v_cvt_pk_bf16_f32 v8, v8, v9"); A("v_cvt_pk_bf16_f32 v9, v10, v11")
    A("ds_write_b64 v5, v[8:9]")
    A("s_waitcnt lgkmcnt(0)")
    stamp(4)
    A("s_barrier")
    A("s_setprio 0")
    if comm_off == 3:
        A("s_barrier"); A("s_barrier"); stamp(10); stamp_flush(); A("s_endpgm")
    if not gate_first: gate_and_setup()
    if CH:
        for n, xm in enumerate(CT):
            A(f"s_xor_b32 s41, s2, {xm}"); A("s_and_b32 s42, s41, 7"); A("s_lshr_b32 s43, s41, 6"); A("s_lshl2_add_u32 s42, s42, s43")
            A("s_bfe_u32 s43, s41, 0x10005"); A("s_lshl_b32 s43, s43, 5"); A("s_add_u32 s42, s42, s43")
            A("s_bfe_u32 s43, s41, 0x20003"); A("s_lshl_b32 s43, s43, 18"); A("s_lshl_b32 s41, s42, 20"); A("s_add_u32 s41, s41, s43")
            A(f"s_add_u32 s{60+4*n}, s8, s41"); A(f"s_addc_u32 s{61+4*n}, s9, 0"); A(f"s_mov_b32 s{62+4*n}, 0x40000"); A(f"s_mov_b32 s{63+4*n}, 0x20000")
            A(f"s_mul_i32 s42, s42, {ROT*1024}"); A("s_sub_u32 s42, s42, 128"); A("v_lshlrev_b32 v37, 7, v0"); A("v_sub_u32 v37, s42, v37")
            for i in range(CH):
                A(f"v_subrev_u32 v38, {8192*i}, v37"); A(f"v_and_b32 v{40+4*n+i}, 0x3ffff, v38")
    stamp(5)
    A("s_barrier                               ; 2")
    stamp(6)
    if YPRE:
        A("s_lshl2_add_u32 s41, s34, s37"); A("s_lshl_b32 s41, s41, 11"); A("s_lshl_b32 s42, s36, 18"); A("s_add_u32 s41, s41, s42"); A(f"s_add_u32 s41, s41, {WS_Y}")
        if YPRE[0] == "ld":
            A("v_lshlrev_b32 v37, 5, v0"); A("v_add_u32 v37, s41, v37"); A(f"global_load_dword v38, v37, s[30:31] {YPRE[1]}")
        else:
            A("v_add_u32 v37, s41, v60"); A("s_not_b32 s42, s84")
            for k in range(4): A(f"v_mov_b32 v{40+k}, s42")
            A(f"global_store_dwordx4 v37, v[40:43], s[30:31] {YPRE[1]}"); A(f"global_store_dwordx4 v37, v[40:43], s[30:31] offset:1024 {YPRE[1]}")
    if OPRE:
        A("s_mov_b64 exec, 0xffff"); A("v_lshlrev_b32 v37, 7, v0"); A("global_load_dword v39, v37, s[26:27]"); A("s_mov_b64 exec, -1")
    def qcomb():
        A("v_mov_b32 v32, v8")
        for qp in ("[1,0,3,2]", "[2,3,0,1]"):
            A("s_nop 1"); A(f"v_max_f32_dpp v32, v32, v32 quad_perm:{qp} row_mask:0xf bank_mask:0xf")
        A("v_sub_f32 v8, v8, v32"); A("v_exp_f32 v8, v8"); A("s_nop 0")
        A("v_mul_f32 v34, v10, v8")
        for qp in ("[1,0,3,2]", "[2,3,0,1]"):
            A("s_nop 1"); A(f"v_add_f32_dpp v34, v34, v34 quad_perm:{qp} row_mask:0xf bank_mask:0xf")
    C("wait for the four waves' (max,sum) of both branches, publish this workgroup's")
    A(f"s_mov_b32 s90, {spin*4}")
    A("L_wl:")
    A(f"s_sleep {lsleep}")
    A("ds_read_b32 v10, v27 offset:16")
    A("s_waitcnt lgkmcnt(0)")
    A("v_cmp_eq_u32 vcc, 0, v10"); A("s_nop 1")
    A("s_cmp_eq_u64 vcc, 0"); A("s_cbranch_scc1 L_wl_ok")
    A("s_sub_u32 s90, s90, 1"); A("s_cbranch_scc0 L_wl")
    A("L_wl_ok:")
    A("ds_read_b32 v8, v27")
    A("s_waitcnt lgkmcnt(0)")
    qcomb()
    A("v_mov_b32 v36, v8")
    A("s_mov_b64 exec, s[58:59]")
    A("global_store_dwordx4 v26, v[32:35], s[30:31] sc1")
    A("s_mov_b64 exec, -1")
    stamp(7)
    C("once the stream has moved on, collect the four splits' statistics")
    A(f"s_mov_b32 s90, {spin*4}")
    A("L_wp:")
    A(f"s_sleep {lsleep}")
    A("ds_read_b32 v9, v28 offset:128")
    A("s_waitcnt lgkmcnt(0)")
    A("v_readfirstlane_b32 s41, v9"); A("s_nop 1")
    A("s_cmp_lg_u32 s41, 0"); A("s_cbranch_scc1 L_wp_ok")
    A("s_sub_u32 s90, s90, 1"); A("s_cbranch_scc0 L_wp")
    A("L_wp_ok:")
    A(f"s_mov_b32 s90, {spin}")
    if OP2:
        C("address translation of d_out for the final stores (the loaded words are not used)")
        A(f"s_mov_b64 exec, {(1 << OP2) - 1:#x}"); A("v_lshlrev_b32 v37, 7, v0"); A("global_load_dword v39, v37, s[26:27]")
    A("s_mov_b64 exec, 0xff")
    A("L_ml:")
    A("global_load_dwordx4 v[8:11], v26, s[30:31] sc1")
    A("s_waitcnt vmcnt(0)")
    A("v_xor_b32 v9, s92, v9"); A("v_xor_b32 v11, s93, v11"); A("v_or_b32 v9, v9, v11")
    A("v_cmp_ne_u32 vcc, 0, v9"); A("s_nop 1")
    A("s_cmp_eq_u64 vcc, 0"); A("s_cbranch_scc1 L_ml_ok")
    A(f"s_sleep {mlsleep}")
    A("s_sub_u32 s90, s90, 1"); A("s_cbranch_scc0 L_ml")
    A("L_ml_ok:")
    qcomb()
    A("v_rcp_f32 v34, v34"); A("v_mul_f32 v8, v30, v8"); A("v_mul_f32 v8, v8, v34")
    A("s_mov_b64 exec, s[58:59]")
    A("ds_write_b32 v29, v8 offset:32")
    A("v_readlane_b32 s41, v8, s37")
    A("s_mov_b64 exec, 0xf"); A("s_nop 0")
    A("v_mul_f32 v36, s41, v36")
    A("ds_write_b32 v27, v36 offset:48")
    A("s_mov_b64 exec, -1")
    if CH:
        A(f"s_mov_b32 s90, {spin*4}")
        A("L_w2:")
        A("s_sleep 1")
        A("ds_read_b32 v9, v28 offset:132")
        A("s_waitcnt lgkmcnt(0)")
        A("v_readfirstlane_b32 s41, v9"); A("s_nop 1")
        A("s_cmp_ge_u32 s41, 4"); A("s_cbranch_scc1 L_w2_ok")
        A("s_sub_u32 s90, s90, 1"); A("s_cbranch_scc0 L_w2")
        A("L_w2_ok:")
        for n in range(len(CT)):
            for i in range(CH): A(f"buffer_load_dword v{60+i}, v{40+4*n+i}, s[{60+4*n}:{63+4*n}], 0 offen {HF}")
    A("s_waitcnt lgkmcnt(0)")
    stamp(9)
    A("s_barrier                               ; 3")
    stamp(10)
    if ampc:
        A("s_cmp_lg_u32 s2, 0"); A("s_cbranch_scc1 L_end")
        if ampc[0] < 0: A(f"s_mov_b32 s96, {ampc[1]}")
        else: A("s_sub_u32 s96, s96, s98"); A(f"s_mul_i32 s96, s96, {ampc[1]}")
        A("s_min_u32 s10, s96, 100000"); A("s_add_u32 s10, s10, 5000")
        A("L_ampc:"); A("s_memrealtime s[96:97]"); A("s_waitcnt lgkmcnt(0)"); A("s_sub_u32 s96, s96, s98"); A("s_cmp_lt_u32 s96, s10"); A("s_cbranch_scc1 L_ampc")
    stamp_flush()
    A("L_end:")
    A("s_endpgm")

    vK, vV, vN, vW = 1, 2, 3, 4
    MASK = 5
    vOW, vOR = 9, 10
    TRA = 11
    vY = 15
    Q, S = 20, 36
    vM, vQ, vG, vO = 52, 53, 54, 55
    AOP = [56, 60]
    DK = [64, 68]
    O, T, F, OA = 72, 76, 80, 84
    BT, NBT = 100, 7
    X, Y = 128, 192
    C("================ waves 1..4 ================")
    role[0] = "comp"
    A("L_comp:")
    pre = []; post = []
    P_ = pre.append; Fm = post.append
    P_("s_sub_u32 s39, s38, 1")
    P_("s_lshl_b32 s75, s36, 5"); P_("s_add_u32 s75, s75, s34"); P_("s_lshl_b32 s40, s75, 20")
    if not (RA and RB): P_(f"s_mul_i32 s75, s75, {ROT}"); P_("s_add_u32 s75, s75, s39"); P_("s_lshl_b32 s75, s75, 10")
    P_("s_lshl_b32 s41, s37, 16"); P_("s_add_u32 s41, s41, s40"); P_(f"s_add_u32 s41, s41, {3072*256}")
    P_(f"v_lshrrev_b32 v{vK}, 2, v17"); P_(f"v_lshlrev_b32 v{vK}, 8, v{vK}"); P_(f"v_lshl_add_u32 v{vK}, v16, 6, v{vK}")
    P_(f"v_and_b32 v{vN}, 3, v0"); P_(f"v_lshl_add_u32 v{vK}, v{vN}, 4, v{vK}")
    P_(f"v_lshlrev_b32 v{vV}, 4, v0")
    P_(f"v_lshlrev_b32 v{vW}, 4, v17"); P_(f"v_lshlrev_b32 v{OA}, 6, v16"); P_(f"v_xor_b32 v{vW}, v{vW}, v{OA}"); P_(f"v_lshl_add_u32 v{vW}, v16, 10, v{vW}")
    P_("s_movk_i32 s72, 0x1000"); P_("s_mov_b32 s73, 0x3ffff"); P_("s_mov_b32 s83, 0xffff")
    def rotreg(dst, spec):
        mode, r = spec
        if r == 0: P_(f"s_lshl_b32 {dst}, s39, 10"); return
        if mode == "wg": P_(f"s_mul_i32 {dst}, s2, {r}")
        elif mode == "bh": P_(f"s_lshr_b32 {dst}, s40, 20"); P_(f"s_mul_i32 {dst}, {dst}, {r}")
        elif mode == "j": P_(f"s_mul_i32 {dst}, s33, {r}")
        elif mode == "x": P_(f"s_mul_i32 {dst}, s32, {r}")
        P_(f"s_add_u32 {dst}, {dst}, s39"); P_(f"s_lshl_b32 {dst}, {dst}, 10")
    if RB: rotreg("s74", RB); P_("s_and_b32 s74, s74, s83")
    else: P_("s_and_b32 s74, s75, s83")
    if RA: rotreg("s75", RA)
    P_("s_and_b32 s75, s75, s73")
    P_("s_mov_b32 s54, 0x10000"); P_("s_mov_b32 s55, 0x20000"); P_("s_mov_b32 s58, 0x10000"); P_("s_mov_b32 s59, 0x20000")
    P_("s_mov_b32 s62, 0x20000"); P_("s_mov_b32 s63, 0x20000")
    P_("s_lshl_b32 s42, s34, 17"); P_("s_lshl_b32 s43, s39, 8"); P_("s_add_u32 s42, s42, s43")
    P_(f"s_mul_i32 s79, s39, {WO_SLICE}")
    if NF: P_(f"s_mul_i32 s77, s39, {1024*NF}"); P_(f"s_add_u32 s77, s77, {L_F0}")
    P_("s_lshl_b32 s80, s37, 18"); P_("s_add_u32 s80, s80, s40")
    srds = ["s_add_u32 s52, s16, s41", "s_addc_u32 s53, s17, 0", "s_add_u32 s56, s18, s41", "s_addc_u32 s57, s19, 0",
            "s_add_u32 s60, s22, s42", "s_addc_u32 s61, s23, 0",
            "s_add_u32 s44, s6, s80", "s_addc_u32 s45, s7, 0", "s_add_u32 s48, s8, s80", "s_addc_u32 s49, s9, 0",
            "s_add_u32 s84, s12, s42", "s_addc_u32 s85, s13, 0", "s_add_u32 s68, s30, s81", "s_addc_u32 s69, s31, 0",
            "s_mov_b32 s92, s26", "s_mov_b32 s93, s27"]
    Fm("s_mov_b32 s46, 0x40000"); Fm("s_mov_b32 s47, 0x20000"); Fm("s_mov_b32 s50, 0x40000"); Fm("s_mov_b32 s51, 0x20000")
    Fm("s_mov_b32 s86, 0x20000"); Fm("s_mov_b32 s87, 0x20000")
    Fm(f"v_and_b32 v{OA}, 1, v17"); Fm(f"v_lshlrev_b32 v{OA}, 4, v{OA}"); Fm(f"v_mov_b32 v{OA+1}, 0xffff")
    Fm(f"v_lshlrev_b32 v{OA}, v{OA}, v{OA+1}"); Fm(f"v_lshrrev_b32 v{OA+1}, 1, v17")
    for j in range(4):
        Fm(f"v_cmp_eq_u32 vcc, {j}, v{OA+1}"); Fm("s_nop 1"); Fm(f"v_cndmask_b32 v{MASK+j}, 0, v{OA}, vcc")
    Fm(f"s_mul_i32 s43, s39, {O_ROW}"); Fm(f"s_add_u32 s43, s43, {L_O}")
    Fm(f"v_lshrrev_b32 v{vOW}, 1, v16"); Fm(f"v_lshlrev_b32 v{vOW}, 8, v{vOW}"); Fm(f"v_lshl_add_u32 v{vOW}, v17, 4, v{vOW}")
    Fm(f"v_and_b32 v{OA}, 1, v16"); Fm(f"v_lshl_add_u32 v{vOW}, v{OA}, 3, v{vOW}"); Fm(f"v_add_u32 v{vOW}, s43, v{vOW}")
    Fm(f"v_mul_u32_u24 v{vOR}, {O_ROW}, v{vN}"); Fm(f"v_lshl_add_u32 v{vOR}, v16, 4, v{vOR}"); Fm(f"v_add_u32 v{vOR}, {L_O}, v{vOR}")
    Fm(f"v_lshl_add_u32 v{vQ}, v16, 2, v{vN}"); Fm(f"v_lshlrev_b32 v{vQ}, 4, v{vQ}"); Fm(f"v_add_u32 v{vQ}, {L_Q}, v{vQ}")
    Fm(f"v_lshrrev_b32 v{OA+1}, 2, v17")
    Fm(f"v_mul_u32_u24 v{OA+2}, 2080, v16"); Fm(f"v_lshl_add_u32 v{OA+2}, v{OA+1}, 8, v{OA+2}"); Fm(f"v_lshl_add_u32 v{OA+2}, v{vN}, 3, v{OA+2}")
    Fm(f"v_add_u32 v{OA+2}, s79, v{OA+2}")
    for ch in range(4):
        Fm(f"v_xor_b32 v{OA+3}, {ch}, v{OA+1}"); Fm(f"v_lshl_add_u32 v{TRA+ch}, v{OA+3}, 6, v{OA+2}")
    Fm("s_lshl_b32 s43, s39, 9"); Fm(f"v_add_u32 v{vY}, s43, v{vV}")
    Fm(f"v_lshrrev_b32 v{OA+3}, 5, v0"); Fm(f"v_lshl_add_u32 v{vY}, v{OA+3}, 30, v{vY}")
    P_("s_lshl2_add_u32 s81, s34, s37"); P_("s_lshl_b32 s81, s81, 11"); P_("s_lshl_b32 s43, s36, 18"); P_("s_add_u32 s81, s81, s43"); P_(f"s_add_u32 s81, s81, {WS_Y}")
    Fm("s_movk_i32 s70, 0x800"); Fm("s_mov_b32 s71, 0x20000")
    Fm(f"s_movk_i32 s82, {(1<<TB)-1:#x}")
    if CMAP == 0:
        Fm("s_lshr_b32 s88, s32, 1"); Fm("s_lshl_b32 s88, s88, 4"); Fm("s_lshr_b32 s43, s33, 1"); Fm("s_add_u32 s88, s88, s43")
        Fm("s_or_b32 s89, s32, s33"); Fm("s_and_b32 s89, s89, 1")
    elif CMAP == 1:
        Fm("s_lshl_b32 s88, s32, 3"); Fm("s_lshr_b32 s43, s33, 2"); Fm("s_add_u32 s88, s88, s43"); Fm("s_and_b32 s89, s33, 3")
    elif CMAP == 2:
        Fm("s_lshr_b32 s88, s32, 2"); Fm("s_lshl_b32 s88, s88, 5"); Fm("s_add_u32 s88, s88, s33"); Fm("s_and_b32 s89, s32, 3")
    Fm("s_lshl2_add_u32 s88, s88, s39")
    Fm("s_lshr_b32 s78, s88, 7"); Fm("s_lshl_b32 s78, s78, 18"); Fm("s_and_b32 s43, s88, 127"); Fm("s_lshl4_add_u32 s78, s43, s78"); Fm(f"s_add_u32 s78, s78, {WS_Y}")
    Fm(f"v_lshlrev_b32 v{vG}, 11, v0"); Fm(f"v_add_u32 v{vG}, s78, v{vG}")
    Fm("s_lshr_b32 s78, s88, 4"); Fm("s_lshl_b32 s78, s78, 7"); Fm("s_and_b32 s43, s88, 15"); Fm("s_lshl1_add_u32 s78, s43, s78")
    Fm(f"v_lshlrev_b32 v{vO}, 5, v16"); Fm(f"v_lshl_add_u32 v{vO}, v17, 20, v{vO}"); Fm(f"v_add_u32 v{vO}, s78, v{vO}")
    Fm("s_movk_i32 s94, 0x800"); Fm("s_mov_b32 s95, 0x20000"); Fm(f"s_mov_b32 s90, {spin}")
    Fm(f"s_lshl2_add_u32 s64, s39, {L_M}")
    Fm(f"s_mov_b32 s65, {f2u(0.08838834764831845):#x}"); Fm(f"s_mov_b32 s66, {f2u(1.4426950408889634):#x}")
    Fm("s_mov_b32 s67, 0xffff0000"); Fm(f"v_mov_b32 v{vM}, {L_M}")
    for k in range(16): Fm(f"v_mov_b32 v{Q+k}, 0")
    for k in range(4): Fm(f"v_mov_b32 v{T+k}, 0")
    for k in range(4): Fm(f"v_mov_b32 v{O+k}, 0")
    L.extend(pre)
    late_fill = []
    if BAR0 is None:
        A("s_waitcnt lgkmcnt(0)")
        if WSB: A(f"s_add_u32 s30, s30, {WSB}"); A("s_addc_u32 s31, s31, 0")
        stamp(0)
        L.extend(srds); L.extend(post)
    else:
        A("s_waitcnt lgkmcnt(0)")
        if WSB: A(f"s_add_u32 s30, s30, {WSB}"); A("s_addc_u32 s31, s31, 0")
        stamp(0)
        L.extend(srds); A("s_barrier")
        late_fill = post
    NLO = 16 + NF
    if WBI is None: WBI = NLO
    K0L = 1024 * NLO + 32 * (NLO >> 1) - 1024 * NF
    assert K0L + 16 * 1024 <= WO_SLICE
    vm = {"n": 0, "idx": {}, "done": -1}
    freed = set()
    def emit_issue(op):
        oid, lines, req = op
        assert req is None or req in freed, (oid, req)
        if CAP and vm.get("cap") and vm["n"] < CAPEND and vm["done"] < vm["n"] - 1 - CAP:
            A(f"s_waitcnt vmcnt({CAP})"); vm["done"] = vm["n"] - 1 - CAP
        L.extend(lines); vm["idx"][oid] = vm["n"]; vm["n"] += 1
    def emit_need(oid):
        i = vm["idx"][oid]
        if i > vm["done"]:
            A(f"s_waitcnt vmcnt({min(63, vm['n'] - 1 - i)})"); vm["done"] = i
        else:
            A("s_nop 0")
    def cost(t):
        if t.startswith("v_mfma"): return 16
        if t.startswith("v_exp") or t.startswith("v_rcp"): return 8
        if t.startswith("s_nop"): return 4 * (int(t.split()[1]) + 1) if False else 4
        if t.startswith("s_waitcnt lgkm"): return 30
        return 4
    def phase(comp, iss, lead=0.0):
        tot = sum(sum(cost(t) for t in c[1]) if c[0] == "g" else 4 for c in comp)
        acc = 0; k = 0
        for c in comp:
            while k < len(iss) and (k + lead) * tot <= acc * len(iss) and (iss[k][2] is None or iss[k][2] in freed):
                emit_issue(iss[k]); k += 1
            if c[0] == "g": L.extend(c[1]); acc += sum(cost(t) for t in c[1])
            elif c[0] == "need": emit_need(c[1]); acc += 4
            elif c[0] == "free": freed.add(c[1])
        while k < len(iss): emit_issue(iss[k]); k += 1
    def G(*t): return ("g", list(t))
    def mix(a, b):
        out = []; na, nb = len(a), len(b); ia = ib = 0
        while ia < na or ib < nb:
            if ib < nb and (ia >= na or (2 * ib + 1) * na <= 2 * ia * nb): out.append(b[ib]); ib += 1
            else: out.append(a[ia]); ia += 1
        return out
    adv = ["s_add_u32 s75, s75, s72", "s_and_b32 s75, s75, s73"]
    def ld_tile(name, st, srd, vo, prev):
        return [(f"{name}.{k}", [f"buffer_load_dwordx4 v[{st+4*k}:{st+4*k+3}], v{vo}, s[{srd}:{srd+3}], s75 offen nt"] + adv,
                 None if prev is None else f"{prev}.{k}") for k in range(16)]
    def ld_wo(name, srd, lo, hi, req=None):
        return [(f"{name}.{u}", [f"s_add_u32 m0, s79, {1024*u + 32*(u>>1)}", f"s_mov_b32 s78, {4096*u}",
                                 f"buffer_load_dwordx4 v{vW}, s[{srd}:{srd+3}], s78 offen {WOF} lds"], req) for u in range(lo, hi)]
    advB = ["s_add_u32 s74, s74, s72", "s_and_b32 s74, s74, s83"]
    KB = [(f"KB.{k}", [f"buffer_load_dwordx4 v[{X+4*k}:{X+4*k+3}], v{vK}, s[52:55], s74 offen nt"] + advB, None) for k in range(16)]
    VB = [(f"VB.{k}", [f"buffer_load_dwordx4 v[{Y+4*k}:{Y+4*k+3}], v{vV}, s[56:59], s74 offen nt"] + advB, None) for k in range(16)]
    K0 = [(f"K0.{k}", [f"s_add_u32 m0, s77, {1024*k}" if k < NF else f"s_add_u32 m0, s79, {K0L + 1024*k}", "s_nop 0", f"buffer_load_dwordx4 v{vK}, s[44:47], s75 offen nt lds"] + adv, None) for k in range(16)]
    stamp(13)
    C("first loads: K_B, V_B into registers, first K_A tile into LDS, half of wo_B into LDS")
    for n, op in enumerate(mix(KB + K0 + VB if K0MID else KB + VB + K0, ld_wo("WB", 60, 0, WBI))):
        if n == PACE + 1: L.extend(late_fill)
        if n > PACE: A(f"s_waitcnt vmcnt({PACE})")
        emit_issue(op)
    stamp(1)
    vm["cap"] = True
    A("s_barrier")
    stamp(2)

    def extract(u, dst):
        d = DK[u & 1]
        return [G(f"v_mov_b32_dpp v{dst+u}, v{d} quad_perm:[0,0,0,0] row_mask:0xf bank_mask:0xf")] + \
               [G(f"v_add_f32_dpp v{dst+u}, v{d+r}, v{dst+u} quad_perm:[{r},{r},{r},{r}] row_mask:0xf bank_mask:0xf") for r in range(1, 4)]
    def load_q(br):
        c = [G(f"ds_read_b128 v[{OA}:{OA+3}], v{vQ} offset:{br*256}"), G("s_waitcnt lgkmcnt(0)")]
        for j in range(4):
            for k in range(4):
                c.append(G(f"v_mov_b32_dpp v{Q+4*j+k}, v{OA+k} quad_perm:[0,1,2,3] row_mask:0xf bank_mask:{1<<j:#x}"))
        return c
    def ktile(name, st, dst):
        c = []
        for u in range(4):
            d = DK[u & 1]
            for t in range(4):
                k = 4 * u + t
                cc = "0" if t == 0 else f"v[{d}:{d+3}]"
                c.append(("need", f"{name}.{k}"))
                c.append(G(f"v_mfma_f32_16x16x32_bf16 v[{d}:{d+3}], v[{st+4*k}:{st+4*k+3}], v[{Q+4*t}:{Q+4*t+3}], {cc}"))
                c.append(("free", f"{name}.{k}"))
            if u > 0: c += extract(u - 1, dst)
        c.append(G("s_nop 3"))
        return c + extract(3, dst)
    def vtile(name, st, p, extra=None):
        c = []
        for k in range(16):
            u, t = k >> 2, k & 3
            a = AOP[k & 1]
            for j in range(4):
                c.append(G(f"v_and_b32_dpp v{a+j}, v{p+u}, v{MASK+j} row_newbcast:{4*t} row_mask:0xf bank_mask:0xf"))
            c.append(G(*(extra[k] if extra and extra[k] else ["s_nop 0"])))
            c.append(("need", f"{name}.{k}"))
            c.append(G(f"v_mfma_f32_16x16x32_bf16 v[{O}:{O+3}], v[{a}:{a+3}], v[{st+4*k}:{st+4*k+3}], v[{O}:{O+3}]"))
            c.append(("free", f"{name}.{k}"))
        return c
    def wred(op, r):
        return [G("s_nop 1", f"{op}_dpp v{r}, v{r}, v{r} {ctl} bank_mask:0xf") for ctl in
                ("row_ror:4 row_mask:0xf", "row_ror:8 row_mask:0xf", "row_bcast:15 row_mask:0xa", "row_bcast:31 row_mask:0xc")]
    def softmax(n, mslot):
        t0 = OA; c = []
        for rnd in range(2):
            for k in range(0, n, 2): c.append(G(f"v_cvt_pk_bf16_f32 v{t0+k//2}, v{S+k}, v{S+k+1}"))
            for k in range(0, n, 2): c.append(G(f"v_lshlrev_b32 v{S+k}, 16, v{t0+k//2}", f"v_and_b32 v{S+k+1}, s67, v{t0+k//2}"))
            if rnd == 0:
                for k in range(n): c.append(G(f"v_mul_f32 v{S+k}, s65, v{S+k}"))
        c.append(G(f"v_max3_f32 v{t0}, v{S}, v{S+1}, v{S+2}"))
        for k in range(3, n - 1, 2): c.append(G(f"v_max3_f32 v{t0}, v{t0}, v{S+k}, v{S+k+1}"))
        c.append(G(f"v_max_f32 v{t0}, v{t0}, v{S+n-1}"))
        c += wred("v_max_f32", t0)
        c.append(G("s_nop 1", f"v_readlane_b32 s80, v{t0}, 63", f"v_mov_b32 v{t0+2}, s66", "s_nop 1", f"v_mul_f32 v{t0+2}, s80, v{t0+2}"))
        for k in range(n): c.append(G(f"v_fma_f32 v{S+k}, v{S+k}, s66, -v{t0+2}"))
        for k in range(n): c.append(G(f"v_exp_f32 v{S+k}, v{S+k}"))
        c.append(G(f"v_add_f32 v{t0+3}, v{S}, v{S+1}"))
        for k in range(2, n): c.append(G(f"v_add_f32 v{t0+3}, v{t0+3}, v{S+k}"))
        for k in range(n): c.append(G(f"v_cvt_pk_bf16_f32 v{S+k}, v{S+k}, v{S+k}"))
        c += wred("v_add_f32", t0 + 3)
        c.append(G(f"v_mov_b32 v{t0}, s64", "s_mov_b32 exec_lo, 0", "s_mov_b32 exec_hi, 0x80000000",
                   f"ds_write2_b32 v{t0}, v{t0+2}, v{t0+3} offset0:{mslot//4} offset1:{mslot//4+4}", "s_mov_b64 exec, -1"))
        return c
    def kl(dst):
        c = [G(f"v_add_u32 v{OA}, s79, v{vV}")] + ([G(f"v_add_u32 v{OA+1}, s77, v{vV}")] if NF else []) + [("need", "K0.15")]
        rd = lambda k: G(f"ds_read_b128 v[{BT+4*(k%NBT)}:{BT+4*(k%NBT)+3}], v{OA+1} offset:{k*1024}" if k < NF else
                         f"ds_read_b128 v[{BT+4*(k%NBT)}:{BT+4*(k%NBT)+3}], v{OA} offset:{K0L + k*1024}")
        for k in range(NBT - 1): c.append(rd(k))
        for k in range(16):
            u, t = k >> 2, k & 3
            d = DK[u & 1]; bt = BT + 4 * (k % NBT)
            cc = "0" if t == 0 else f"v[{d}:{d+3}]"
            c.append(G(f"s_waitcnt lgkmcnt({min(16, k + NBT - 1) - k - 1})",
                       f"v_mfma_f32_16x16x32_bf16 v[{d}:{d+3}], v[{bt}:{bt+3}], v[{Q+4*t}:{Q+4*t+3}], {cc}"))
            if k + NBT - 1 < 16: c.append(rd(k + NBT - 1))
            if t == 3 and u > 0: c += extract(u - 1, dst)
        c.append(("free", "K0L"))
        c.append(G("s_nop 3"))
        return c + extract(3, dst)
    def owrite(br):
        return [G("s_nop 7"), G(f"v_cvt_pk_bf16_f32 v{OA}, v{O}, v{O+1}", f"v_cvt_pk_bf16_f32 v{OA+1}, v{O+2}, v{O+3}"),
                G(f"ds_write_b64 v{vOW}, v[{OA}:{OA+1}] offset:{br*4*O_ROW}"), G("s_waitcnt lgkmcnt(0)")]
    steps = [(cg, kb) for cg in range(8) for kb in range(4)]
    def trread(n, bt):
        cg, kb = steps[n]
        return [f"ds_read_b64_tr_b16 v[{bt+2*rd}:{bt+2*rd+1}], v{TRA + (cg>>1)} offset:{kb*8320 + rd*1024 + (cg&1)*32}" for rd in range(2)]
    def fin(cg):
        d = DK[cg & 1]
        return [G(f"v_fmac_f32_dpp v{T+(cg&3)}, v{d+r}, v{F+r} quad_perm:[0,1,2,3] row_mask:{1<<(cg>>2):#x} bank_mask:0xf") for r in range(4)]
    GG = AOP[0]
    def fprep(n, br):
        if n == 0: return [G(f"v_max3_f32 v{GG+3}, v{F}, v{F+1}, v{F+2}", f"v_max_f32 v{GG+3}, v{GG+3}, v{F+3}")] + [G(f"v_sub_f32 v{F+r}, v{F+r}, v{GG+3}") for r in range(4)]
        if n == 1: return [G(f"v_exp_f32 v{F+r}, v{F+r}") for r in range(4)]
        if n == 2 and br == 0: return [G(f"v_mul_f32 v{T+r}, v{T+r}, v{GG+1}") for r in range(4)]
        if n == 3 and br == 0: return [G(f"v_mul_f32 v{F+r}, v{F+r}, v{GG}") for r in range(4)]
        return []
    def out_b():
        c = [G(f"ds_read_b128 v[{OA+4*kb}:{OA+4*kb+3}], v{vOR} offset:{4*O_ROW + kb*64}") for kb in range(4)]
        c.append(G(f"ds_read_b128 v[{F}:{F+3}], v{vM} offset:64"))
        nread = 5
        for n in range(nread): c.append(G(*trread(n, BT + 4 * (n % NBT))))
        for n, (cg, kb) in enumerate(steps):
            d = DK[cg & 1]; bt = BT + 4 * (n % NBT)
            cc = "0" if kb == 0 else f"v[{d}:{d+3}]"
            c.append(G(f"s_waitcnt lgkmcnt({2*(nread - n - 1)})",
                       f"v_mfma_f32_16x16x32_bf16 v[{d}:{d+3}], v[{OA+4*kb}:{OA+4*kb+3}], v[{bt}:{bt+3}], {cc}"))
            while nread < 32 and nread - n - 1 < NBT - 1 and 2 * (nread - n) <= 14:
                c.append(G(*trread(nread, BT + 4 * (nread % NBT)))); nread += 1
            c += fprep(n, 1)
            if kb == 3 and cg > 0: c += fin(cg - 1)
        c.append(("free", "WO"))
        c.append(G("s_nop 3"))
        return c + fin(7)

    K1 = ld_tile("K1", X, 44, vK, "KB"); K2 = ld_tile("K2", Y, 44, vK, "VB"); K3 = ld_tile("K3", X, 44, vK, "K1")
    V0 = ld_tile("V0", Y, 48, vV, "K2"); V1 = ld_tile("V1", X, 48, vV, "K3"); V2 = ld_tile("V2", Y, 48, vV, "V0"); V3 = ld_tile("V3", X, 48, vV, "V1")
    WBu = ld_wo("WB", 60, WBI, NLO) + ld_wo("WB", 60, NLO, 32, "K0L"); WA = ld_wo("WA", 84, 0, 32, "WO")
    D3 = DEFER
    if P1A is None:
        phase(load_q(1) + ktile("KB", X, S) + softmax(4, 64) + load_q(0) + kl(S + 4), K1)
        stamp(3)
        phase(vtile("VB", Y, S) + owrite(1), mix(K2, WBu), lead=-1)
        stamp(4)
        phase(ktile("K1", X, S), K3[:16 - D3], lead=-1)
    else:
        phase(load_q(1) + ktile("KB", X, S) + softmax(4, 64), K1[:P1A])
        rest = mix(K1[P1A:] + K2 + K3[:WBX], WBu)
        n1 = max(i for i, op in enumerate(rest) if op[0].startswith("K1.")) + 1
        n2 = max(i for i, op in enumerate(rest) if op[0].startswith("K2.")) + 1
        nfree = min([i for i, op in enumerate(rest) if op[2] == "K0L"] + [n1])
        phase(load_q(0) + kl(S + 4), rest[:nfree])
        stamp(3)
        phase(vtile("VB", Y, S) + owrite(1), rest[nfree:n2], lead=-1)
        stamp(4)
        phase(ktile("K1", X, S), rest[n2:] + K3[WBX:16 - D3], lead=-1)
    emit_need("WB.31")
    stamp(5)
    A("s_barrier")
    stamp(6)
    phase(out_b(), K3[16 - D3:])
    stamp(7)
    w0, w1, w2 = WSPLIT
    phase(ktile("K2", Y, S + 8), mix(V0, WA[:w0]), lead=-1)
    phase(ktile("K3", X, S + 12) + softmax(16, 0) + [G(f"v_mov_b32 v{O+k}, 0") for k in range(4)], mix(V1, WA[w0:w1]))
    stamp(8)
    sig = [G(f"v_mov_b32 v{OA}, {L_P}", f"ds_write_b32 v{OA}, v{OA}")]
    phase(vtile("V0", Y, S + 4) + sig, mix(V2, WA[w1:w2]), lead=-1)
    HL = []
    if HELP:
        V3 = V3[:16 - HELP] + [(i, [l[0].replace(" nt", " " + HF)] + l[1:], r) for i, l, r in V3[16 - HELP:]]
        for hn in range(HN):
            first = [f"s_add_u32 s43, s37, {HD + hn}", "s_and_b32 s43, s43, 3", "s_lshl_b32 s43, s43, 18", "s_add_u32 s43, s43, s40",
                     "s_add_u32 s52, s8, s43", "s_addc_u32 s53, s9, 0", "s_mov_b32 s54, 0x40000", "s_mov_b32 s74, s75", f"s_lshl_b32 s43, s39, 10", f"s_add_u32 m0, s43, {L_F0 + 4096 * NF}"]
            for k in range(HELP):
                HL.append((f"H{hn}.{k}", (first if k == 0 else []) + ["s_sub_u32 s74, s74, s72", "s_and_b32 s74, s74, s73",
                           f"buffer_load_dwordx4 v{vV}, s[52:55], s74 offen {HF} lds"], None))
    v1t = vtile("V1", X, S)
    if CH:
        V3 = V3[:16 - 2*CH] + [(i, [l[0].replace(" nt", " " + HF)] + l[1:], r) for i, l, r in V3[16 - 2*CH:]]
        sig2 = [G(f"v_mov_b32 v{OA+1}, 1", "s_mov_b64 exec, 1", f"ds_add_u32 v{OA}, v{OA+1} offset:4", "s_mov_b64 exec, -1")]
        if CSIG < 16: h_ = len(v1t) * CSIG // 16; v1t = v1t[:h_] + sig2 + v1t[h_:]
    phase(v1t, mix(V3[:10], WA[w2:]) + V3[10:], lead=-1)
    if CH and CSIG >= 16: phase(sig2, [])
    phase(vtile("V2", Y, S + 8), HL, lead=-100)
    dst = [BT + 4 * n for n in range(NBT)] + [Y + 4 * n for n in range(16)] + [X + 4 * n for n in range(32 - 16 - NBT)]
    TG = Q + 4
    A(f"ds_read_b128 v[{TG}:{TG+3}], v{vM} offset:{L_T-L_M}")
    A(f"ds_read_b64 v[{Q+2}:{Q+3}], v{vM} offset:{L_T-L_M+16}")
    A(f"v_add_u32 v{Q}, 0x20000, v{vG}")
    A("s_mov_b64 s[4:5], -1"); A("s_mov_b64 s[6:7], -1"); A("s_mov_b64 s[22:23], 1")
    A(f"s_add_u32 s24, s30, {WS_E}"); A("s_addc_u32 s25, s31, 0"); A("s_cmp_eq_u32 s88, 0"); A("s_cselect_b32 s26, 8, 0"); A("s_mov_b32 s27, 0x20000")
    A("s_waitcnt lgkmcnt(0)")
    for t in range(2): A(f"v_not_b32 v{Q+8+4*t}, v{TG}")
    emit_need("WA.31")
    extra = [[] for _ in range(16)]
    nx = 0
    for k in range(16):
        lim = NBT + 16 + max(0, k - 1)
        cnt = 0
        while nx < 32 and nx < lim and cnt < 3:
            extra[k] += trread(nx, dst[nx]); nx += 1; cnt += 1
    assert nx == 32
    phase(vtile("V3", X, S + 12, extra), [])
    stamp(9)
    phase(owrite(0), [])
    A("s_barrier")
    stamp(10)
    C("output projection of branch A, mix, publish")
    c = [G(f"ds_read_b128 v[{OA+4*kb}:{OA+4*kb+3}], v{vOR} offset:{kb*64}") for kb in range(4)]
    c.append(G(f"ds_read_b128 v[{F}:{F+3}], v{vM} offset:48", f"ds_read_b32 v{GG}, v{vM} offset:36"))
    AC3 = [DK[0], DK[1], O]
    def fin1(cg, r): return f"v_fmac_f32_dpp v{T+(cg&3)}, v{AC3[cg % 3]+r}, v{F+r} quad_perm:[0,1,2,3] row_mask:{1<<(cg>>2):#x} bank_mask:0xf"
    for n, (cg, kb) in enumerate(steps):
        d = AC3[cg % 3]
        cc = "0" if kb == 0 else f"v[{d}:{d+3}]"
        if n < 5: c.append(G(f"s_waitcnt lgkmcnt({[5, 4, 3, 2, 0][n]})"))
        c.append(G(f"v_mfma_f32_16x16x32_bf16 v[{d}:{d+3}], v[{OA+4*kb}:{OA+4*kb+3}], v[{dst[n]}:{dst[n]+3}], {cc}"))
        if cg == 1: c.append(G(f"v_mul_f32 v{T+kb}, v{T+kb}, v{GG}"))
        if cg >= 2: c.append(G(fin1(cg - 2, kb)))
    c += [G(fin1(6, r)) for r in range(4)]
    c += [G(f"v_bfi_b32 v{OA+k}, s82, v{TG+k}, v{T+k}") for k in range(3)]
    c += [G(fin1(7, r)) for r in range(4)]
    c.append(G(f"v_bfi_b32 v{OA+3}, s82, v{TG+3}, v{T+3}"))
    if "noy" not in abl: c.append(G(f"buffer_store_dwordx4 v[{OA}:{OA+3}], v{vY}, s[68:71], 0 offen sc1"))
    phase(c, [])
    stamp(11)
    if comm_off != 4:
        C("final sum over the 128 producers of a batch: four output columns per wave")
        A("s_cmp_lg_u32 s89, 0"); A("s_cbranch_scc1 L_wend")
        YD = Q + 8
        if SAMP:
            C("first watch a sample of the producers, so that most lines are read once, after they were written")
            A(f"s_mov_b32 s4, {SAMP:#x}"); A("s_mov_b32 s5, s4"); A("s_mov_b64 s[6:7], s[4:5]"); A("s_mov_b64 s[8:9], s[4:5]")
        A("L_wpoll:")
        for t in range(2):
            A(f"s_mov_b64 exec, s[{4+2*t}:{5+2*t}]")
            A(f"global_load_dwordx4 v[{YD+4*t}:{YD+4*t+3}], v{vG if t == 0 else Q}, s[30:31] sc1")
        A("s_mov_b64 exec, -1")
        A("s_waitcnt vmcnt(0)")
        for t in range(2):
            d = Y + 4 * t
            for k in range(4): A(f"v_xor_b32 v{d+k}, v{TG+k}, v{YD+4*t+k}")
            A(f"v_or3_b32 v{S}, v{d}, v{d+1}, v{d+2}"); A(f"v_or_b32 v{S}, v{S}, v{d+3}"); A(f"v_and_b32 v{S}, s82, v{S}")
            A(f"v_cmp_ne_u32 s[{4+2*t}:{5+2*t}], 0, v{S}")
        A(f"v_pk_add_f32 v[{Y}:{Y+1}], v[{Y}:{Y+1}], v[{Y+4}:{Y+5}]"); A(f"v_pk_add_f32 v[{Y+2}:{Y+3}], v[{Y+2}:{Y+3}], v[{Y+6}:{Y+7}]")
        A("s_or_b64 s[20:21], s[4:5], s[6:7]")
        A("s_cbranch_scc0 L_wok")
        if SAMP:
            A("s_and_b64 s[20:21], s[20:21], s[8:9]"); A("s_cselect_b64 s[8:9], s[8:9], -1")
            A("s_and_b64 s[4:5], s[4:5], s[8:9]"); A("s_and_b64 s[6:7], s[6:7], s[8:9]")
        A("s_sub_u32 s90, s90, 1"); A("s_cbranch_scc0 L_wpoll")
        A("L_wok:")
        C("every workgroup has read the epoch by now: one lane advances it")
        A("s_mov_b64 exec, s[22:23]")
        if "noe" not in abl: A(f"buffer_store_dwordx2 v[{Q+2}:{Q+3}], off, s[24:27], 0")
        A("s_mov_b64 exec, -1")
        A(f"v_permlane32_swap_b32 v{Y}, v{Y+2}"); A(f"v_permlane32_swap_b32 v{Y+1}, v{Y+3}")
        A(f"v_add_f32 v{Y}, v{Y}, v{Y+2}"); A(f"v_add_f32 v{Y+1}, v{Y+1}, v{Y+3}"); A("s_nop 1")
        A(f"v_permlane16_swap_b32 v{Y}, v{Y+1}")
        A(f"v_add_f32 v{Y}, v{Y}, v{Y+1}")
        for r in (1, 2, 4, 8):
            A("s_nop 1"); A(f"v_add_f32_dpp v{Y}, v{Y}, v{Y} row_ror:{r} row_mask:0xf bank_mask:0xf")
        A(f"v_cvt_pk_bf16_f32 v{Y}, v{Y}, v{Y}")
        if "noout" not in abl: A(f"buffer_store_short v{Y}, v{vO}, s[92:95], 0 offen {OST}")
        stamp(12)
        if amp:
            A("s_cmp_lg_u32 s88, 0"); A("s_cbranch_scc1 L_wend")
            if amp[0] < 0: A(f"s_mov_b32 s96, {amp[1]}")
            else: A("s_sub_u32 s96, s96, s98"); A(f"s_mul_i32 s96, s96, {amp[1]}")
            A("s_min_u32 s10, s96, 100000")
            A("s_memrealtime s[96:97]"); A("s_waitcnt lgkmcnt(0)"); A("s_mov_b32 s11, s96")
            A("L_amp:"); A("s_memrealtime s[96:97]"); A("s_waitcnt lgkmcnt(0)"); A("s_sub_u32 s96, s96, s11"); A("s_cmp_lt_u32 s96, s10"); A("s_cbranch_scc1 L_amp")
        A("L_wend:")
    stamp_flush()
    A("s_endpgm")
    A("L_codeend:")
    A('.section .rodata,"a"'); A(".p2align 6"); A(f".amdhsa_kernel {KN}")
    A("  .amdhsa_next_free_vgpr 256"); A("  .amdhsa_next_free_sgpr 100"); A("  .amdhsa_accum_offset 256")
    A("  .amdhsa_group_segment_fixed_size 0"); A("  .amdhsa_kernarg_size 112"); A("  .amdhsa_user_sgpr_count 2")
    A("  .amdhsa_user_sgpr_kernarg_segment_ptr 1"); A("  .amdhsa_system_sgpr_workgroup_id_x 1")
    A("  .amdhsa_float_denorm_mode_32 3")
    A(".end_amdhsa_kernel")
    open(path, "w").write("\n".join(L) + "\n")

if __name__ == "__main__":
    gen(sys.argv[1], stamps=(len(sys.argv) > 2 and sys.argv[2] == "st"))
```
